```python
import torch

def _softmax(x, axis=-1):
    return torch.softmax(x, dim=axis)

def _gelu(x):
    return torch.nn.functional.gelu(x, approximate='tanh')

def _silu(x):
    return torch.nn.functional.silu(x)

def _sigmoid(x):
    return torch.sigmoid(x)

def _layernorm(x, axis=-1, eps=1e-05):
    m = x.mean(dim=axis, keepdim=True)
    v = x.var(dim=axis, keepdim=True, unbiased=False)
    return (x - m) / torch.sqrt(v + eps)

def _scatter_add(tgt, idx, src, axis=0):
    return tgt.clone().index_add_(axis, idx, src)

def _segment_sum(src, seg, n):
    out = torch.zeros((n,) + src.shape[1:], dtype=src.dtype)
    return out.index_add_(0, seg, src)

def _pad(x, pw):
    flat = tuple((v for pair in reversed(pw) for v in pair))
    return torch.nn.functional.pad(x, flat)
kernel_name = 'gated_mix__memory_aug_recurrent_mem_tr__ssm_conv_s4d__prompt'

def setup_inputs():

    _w = lambda a: (lambda t: t.to(torch.bfloat16) if t.is_floating_point() else t)(torch.as_tensor(a))

    def _A_setup():
        B, S, Dm = (1, 2048, 576)
        H, Dh = (32, 128)
        M, seg = (8, 32)
        seg = min(seg, S)
        S = S // seg * seg
        return {'x': _w((lambda *s: torch.randn(*s, dtype=torch.bfloat16) * 0.05)(B, S, Dm)), 'mem0': _w((lambda *s: torch.randn(*s, dtype=torch.bfloat16) * 0.4)(B, M, Dm)), 'Wq': _w((lambda *s: torch.randn(*s, dtype=torch.bfloat16) * 6.4)(Dm, H, Dh) * Dm ** (-0.5)), 'Wk': _w((lambda *s: torch.randn(*s, dtype=torch.bfloat16) * 6.4)(Dm, H, Dh) * Dm ** (-0.5)), 'Wv': _w((lambda *s: torch.randn(*s, dtype=torch.bfloat16) * 0.4)(Dm, H, Dh) * Dm ** (-0.5)), 'Wo': _w((lambda *s: torch.randn(*s, dtype=torch.bfloat16) * 0.4)(H, Dh, Dm) * (H * Dh) ** (-0.5)), 'seg_len': seg}
    _A_in = _A_setup()

    def _B_setup():
        Bsz, L, D, N = (1, 2048, 576, 128)
        return {'u': _w((lambda *s: torch.randn(*s, dtype=torch.bfloat16) * 0.05)(Bsz, L, D)), 'log_A_real': _w((lambda *s: torch.randn(*s, dtype=torch.bfloat16) * 6.4)(D, N) * 0.5), 'A_imag': _w((lambda *s: torch.randn(*s, dtype=torch.bfloat16) * 0.05)(D, N) * 3.14), 'C_real': _w((lambda *s: torch.randn(*s, dtype=torch.bfloat16) * 0.2)(D, N) / N ** 0.5), 'C_imag': _w((lambda *s: torch.randn(*s, dtype=torch.bfloat16) * 0.2)(D, N) / N ** 0.5), 'log_dt': _w((lambda *s: torch.randn(*s, dtype=torch.bfloat16) * 0.05)(D) * 0.5 - 4.0), 'D_skip': _w((lambda *s: torch.randn(*s, dtype=torch.bfloat16) * 0.05)(D))}
    _B_in = _B_setup()
    return {'A_x': _A_in['x'], 'A_mem0': _A_in['mem0'], 'A_Wq': _A_in['Wq'], 'A_Wk': _A_in['Wk'], 'A_Wv': _A_in['Wv'], 'A_Wo': _A_in['Wo'], 'A_seg_len': _A_in['seg_len'], 'B_u': _B_in['u'], 'B_log_A_real': _B_in['log_A_real'], 'B_A_imag': _B_in['A_imag'], 'B_C_real': _B_in['C_real'], 'B_C_imag': _B_in['C_imag'], 'B_log_dt': _B_in['log_dt'], 'B_D_skip': _B_in['D_skip'], 'gate_w': _w((lambda *s: torch.randn(*s, dtype=torch.bfloat16) * 0.05)(576) * 16.0)}

def reference(A_x, A_mem0, A_Wq, A_Wk, A_Wv, A_Wo, A_seg_len, B_u, B_log_A_real, B_A_imag, B_C_real, B_C_imag, B_log_dt, B_D_skip, gate_w):

    def _A_ref(x, mem0, Wq, Wk, Wv, Wo, seg_len):
        B, S, Dm = x.shape
        H, Dh = (Wq.shape[1], Wq.shape[2])
        M = mem0.shape[1]
        scale = Dh ** (-0.5)
        n_seg = S // seg_len
        L = M + seg_len
        idx = torch.arange(L)
        mask = (idx[:, None] < M) | (idx[:, None] >= idx[None, :])
        mem = mem0
        outs = []
        for s in range(n_seg):
            xs = x[:, s * seg_len:(s + 1) * seg_len, :].clone()
            h = torch.concatenate([mem, xs], axis=1)
            q = torch.einsum('btd,dhe->bhte', h, Wq)
            k = torch.einsum('btd,dhe->bhte', h, Wk)
            v = torch.einsum('btd,dhe->bhte', h, Wv)
            scores = torch.einsum('bhqe,bhke->bhqk', q, k) * scale
            scores = torch.where(mask[None, None], scores, -1000000000.0)
            p = _softmax(scores, axis=-1)
            o = torch.einsum('bhqk,bhke->bhqe', p, v)
            o = torch.einsum('bhte,hed->btd', o, Wo)
            mem = o[:, :M, :].clone()
            outs.append(o[:, M:, :])
        return torch.concatenate(outs, axis=1)

    def _B_ref(u, log_A_real, A_imag, C_real, C_imag, log_dt, D_skip):
        L = u.shape[1]
        dt = torch.exp(log_dt)
        A = -torch.exp(log_A_real) + 1j * A_imag
        C = (C_real + 1j * C_imag) * dt[:, None]
        pos = (lambda x, dt: x.to(dt))(torch.arange(L), log_dt.dtype)
        P = torch.exp((A * dt[:, None])[:, :, None] * pos[None, None, :])
        K = 2.0 * torch.einsum('dn,dnl->dl', C, P).real
        L2 = 2 * L
        u_t = (lambda x, *d: x.permute(*d))(u, 0, 2, 1)
        Kf = (lambda x, *a, **k: torch.fft.rfft(x.float(), *a, **k))(K, L2)
        Uf = (lambda x, *a, **k: torch.fft.rfft(x.float(), *a, **k))(u_t, L2)
        y = (lambda x, *a, **k: torch.fft.irfft(x, *a, **k).to(torch.bfloat16))(Uf * Kf[None, :, :], L2)[:, :, :L]
        y = (lambda x, *d: x.permute(*d))(y, 0, 2, 1)
        return y + u * D_skip[None, None, :]
    x = A_x
    g = _sigmoid((x * gate_w).sum(-1, keepdims=True))
    a = _A_ref(x, A_mem0, A_Wq, A_Wk, A_Wv, A_Wo, A_seg_len)
    b = _B_ref(x, B_log_A_real, B_A_imag, B_C_real, B_C_imag, B_log_dt, B_D_skip)
    return g * a + (1 - g) * b
```

```python
import re

def v(a, n=1): return f"v{a}" if n == 1 else f"v[{a}:{a+n-1}]"
def a_(a, n=1): return f"a{a}" if n == 1 else f"a[{a}:{a+n-1}]"
def s(a, n=1): return f"s{a}" if n == 1 else f"s[{a}:{a+n-1}]"
def r(a, n=1):
    if a < 256:
        assert a + n <= 256
        return v(a, n)
    assert a + n <= 512
    return a_(a - 256, n)

_re_reg = re.compile(r"^(v|a|s)(\d+)$|^(v|a|s)\[(\d+):(\d+)\]$")
def regs(op):
    op = op.strip()
    neg = op.lstrip("-|").rstrip("|")
    if neg in ("vcc",): return {("s", 106), ("s", 107)}
    if neg == "vcc_lo": return {("s", 106)}
    if neg == "vcc_hi": return {("s", 107)}
    if neg == "exec": return {("s", 126), ("s", 127)}
    if neg == "m0": return {("s", 124)}
    m = _re_reg.match(neg)
    if not m: return set()
    if m.group(1): k, lo, hi = m.group(1), int(m.group(2)), int(m.group(2))
    else: k, lo, hi = m.group(3), int(m.group(4)), int(m.group(5))
    if k == "a": k, lo, hi = "v", lo + 256, hi + 256
    return {(k, i) for i in range(lo, hi + 1)}

TRANS = ("v_exp_", "v_log_", "v_rcp_", "v_rsq_", "v_sqrt_", "v_sin_", "v_cos_")
class Ins:
    __slots__ = ("text", "op", "kind", "w", "rd", "srcc", "srcab", "passes", "dpp", "stdata", "sg")
    def __init__(self, text):
        self.text = text
        t = text.split(";")[0].strip()
        p = t.split(None, 1)
        self.op = op = p[0]
        rest = p[1] if len(p) > 1 else ""
        ops = [x.strip() for x in rest.split(",")] if rest else []
        mods = ""
        if ops:
            q = ops[-1].split(None, 1)
            ops[-1] = q[0]; mods = q[1] if len(q) > 1 else ""
        clean = []
        for i, o in enumerate(ops):
            q = o.split(None, 1)
            clean.append(q[0])
            if len(q) > 1:
                mods = q[1] + " " + mods
                break
        ops = clean
        self.w = set(); self.rd = set(); self.srcc = set(); self.srcab = set(); self.passes = 0
        self.dpp = ("_dpp" in op) or ("quad_perm" in t) or ("row_" in t); self.stdata = set(); self.sg = False
        R = [regs(o) for o in ops]
        U = lambda l: set().union(*l) if l else set()
        if op.startswith("v_mfma") or op.startswith("v_smfmac"):
            self.kind = "mfma"
            self.w = R[0]
            if op.startswith("v_smfmac"):
                self.srcc = R[0]; self.srcab = R[1] | R[2] | R[3]
            else:
                self.srcc = R[3]; self.srcab = R[1] | R[2]
            self.rd = self.srcc | self.srcab
            self.sg = op.endswith("_f32") and op.startswith("v_mfma_f32") and ("x4_f32" in op or "x2_f32" in op)
            self.passes = 8 if "32x32" in op else 4
            if self.sg: self.passes *= 2
        elif op.startswith("v_"):
            self.kind = "trans" if op.startswith(TRANS) else "valu"
            if op.startswith("v_permlane") and "swap" in op or op.startswith("v_swap"):
                self.w = R[0] | R[1]; self.rd = R[0] | R[1]
            elif op.startswith("v_cmp"):
                self.w = R[0]; self.rd = U(R[1:])
            elif "_co_" in op:
                self.w = R[0] | R[1]; self.rd = U(R[2:])
            else:
                self.w = R[0]; self.rd = U(R[1:])
                if op.startswith(("v_fmac", "v_mac", "v_writelane", "v_dot2c", "v_pk_fmac")) or self.dpp: self.rd |= R[0]
        elif op.startswith(("global_", "buffer_")):
            self.kind = "vmem"
            islds = "_lds_" in op or re.search(r"\blds\b", t) is not None
            if op in ("buffer_inv", "buffer_wbl2"): pass
            elif "load" in op and not islds:
                self.w = R[0]; self.rd = U(R[1:])
            elif islds:
                self.rd = U(R) | regs("m0")
            elif "atomic" in op and re.search(r"\bsc0\b", t) and op.startswith("global_"):
                self.w = R[0]; self.rd = U(R[1:])
            else:
                self.rd = U(R)
                if "x3" in op or "x4" in op:
                    self.stdata = R[1] if op.startswith("global_") else R[0]
        elif op.startswith("ds_"):
            self.kind = "ds"
            if "read" in op or "rtn" in op or "permute" in op or "swizzle" in op:
                self.w = R[0]; self.rd = U(R[1:])
            else: self.rd = U(R)
        elif op.startswith("s_"):
            self.kind = "salu"
            if op.startswith(("s_cmp", "s_cbranch", "s_branch", "s_waitcnt", "s_nop", "s_barrier", "s_sleep", "s_setprio", "s_endpgm", "s_bitcmp")):
                self.rd = U(R)
            else:
                self.w = R[0] if R else set(); self.rd = U(R[1:])
                if "saveexec" in op: self.w = self.w | regs("exec")
        else:
            raise ValueError("unknown instr " + text)

def need(p, c):
    n = 0
    pv = p.kind in ("valu", "trans"); cv = c.kind in ("valu", "trans")
    if pv:
        wv = {x for x in p.w if x[0] == "v"}; ws = {x for x in p.w if x[0] == "s"}
        if c.kind == "mfma" and wv & c.rd: n = max(n, 2)
        if cv and (c.dpp or c.op.startswith("v_permlane")) and wv & c.rd: n = max(n, 2)
        if c.op.startswith(("v_readlane", "v_readfirstlane")) and wv & c.rd: n = max(n, 1)
        if p.kind == "trans" and cv and wv & c.rd: n = max(n, 1)
        if ws:
            if c.kind == "vmem" and ws & c.rd: n = max(n, 5)
            if cv and ws & c.rd: n = max(n, 4 if c.op.startswith(("v_readlane", "v_writelane")) else 2)
            if cv and c.op.startswith(("v_cndmask", "v_addc", "v_subb")) and ("s", 106) in ws and not any(x[0] == "s" for x in c.rd): n = max(n, 2)
        if p.op.startswith("v_dot") and (wv & (c.rd | c.w)): n = max(n, 3)
    if p.kind == "mfma":
        P = p.passes
        if p.sg: ov, ab = {4: 4, 8: 8, 16: 16}[P], {4: 6, 8: 10, 16: 18}[P]
        else: ov, ab = {4: 6, 8: 10, 16: 18}[P], {4: 8, 8: 12, 16: 20}[P]
        if c.kind == "mfma":
            if p.w & c.srcab: n = max(n, ab)
            if p.w & c.srcc and not (p.w == c.srcc and p.passes == c.passes and p.sg == c.sg): n = max(n, ov)
            if p.w & c.w and not (p.w == c.w): n = max(n, ov)
        elif c.kind in ("valu", "trans", "vmem", "ds"):
            if p.w & (c.rd | c.w): n = max(n, ab)
            if cv and not p.sg and p.srcc & c.w: n = max(n, {4: 3, 8: 7, 16: 15}[P])
    if p.stdata and c.w & p.stdata: n = max(n, 2 if cv else 1)
    if p.kind == "salu" and ("s", 124) in p.w and ("s", 124) in c.rd and c.kind in ("vmem", "ds"): n = max(n, 1)
    return n

class Asm:
    def __init__(self, mfma_timing=True):
        self.out = []
        self.hist = []
        self.t = 0
        self.tm = -100
        self.mfma_timing = mfma_timing
        self.uid = 0
        self.ninstr = 0
    def label(self, name):
        self.out.append(name + ":")
        self.tm = -100
    def newlabel(self, base):
        self.uid += 1
        return f"{base}_{self.uid}"
    def raw(self, text): self.out.append(text)
    def comment(self, text): self.out.append("; " + text)
    def _nop(self, n):
        while n > 0:
            k = min(n, 16)
            self.out.append(f"s_nop {k-1}"); self.t += k; n -= k; self.ninstr += 1
    def __call__(self, text):
        for line in text.split("\n"):
            line = line.strip()
            if not line: continue
            if line.startswith(";"): self.out.append(line); continue
            if line.endswith(":"): self.label(line[:-1]); continue
            i = Ins(line)
            if i.op == "s_nop":
                self._nop(int(line.split()[1]) + 1); continue
            ti = self.t
            if i.kind == "mfma" and self.mfma_timing and self.tm > ti:
                d = self.tm - ti
                k = max([j for j, (p, tp) in enumerate(self.hist) if p.kind == "mfma"], default=-1)
                req0 = ti
                for p, tp in self.hist[k+1:]:
                    n = need(p, i)
                    if n: req0 = max(req0, tp + 1 + n)
                if req0 > ti:
                    self._nop(req0 - ti); ti = self.t
                if self.tm > ti:
                    req1 = self.tm
                    for p, tp in self.hist[:k+1]:
                        n = need(p, i)
                        if n: req1 = max(req1, tp + 1 + n)
                    if req1 == self.tm:
                        d = self.tm - ti
                        self.hist = self.hist[:k+1] + [(p, tp + d) for p, tp in self.hist[k+1:]]
                        ti = self.t = self.tm
            req = ti
            for p, tp in self.hist:
                n = need(p, i)
                if n: req = max(req, tp + 1 + n)
            if req > ti:
                self._nop(req - self.t); ti = self.t
            self.out.append(line); self.ninstr += 1
            self.hist.append((i, ti))
            self.t = ti + 1
            if i.kind == "mfma": self.tm = ti + i.passes
            self.hist = [(p, tp) for p, tp in self.hist if self.t - tp <= 22]
    def flush(self):
        req = self.t
        for p, tp in self.hist:
            n = 0
            if p.kind == "mfma": n = {4: 8, 8: 12, 16: 20}[p.passes]
            elif p.kind in ("valu", "trans"): n = 5 if any(x[0] == "s" for x in p.w) else 3
            elif p.stdata: n = 2
            elif p.kind == "salu": n = 1 if ("s", 124) in p.w else 0
            req = max(req, tp + 1 + n)
        if req > self.t: self._nop(req - self.t)
        self.hist = []
    def text(self): return "\n".join(self.out)
```

```python
from common import *
LBASE = 147456
L_S, L_SM, L_O = 9216, 13312, 14336
vLB, vPST, vPUB, vOWR, vIDX, vPF, vWOB, vT = 0, 1, 2, 3, 4, 5, 6, 7
SELT, SELR = 8, 12
ACC = 16
KX, VX, GEN = 40, 48, 56
sTILE = 50
sPUBM, sQM = 60, 62
sR1, sR2, sG, sKV, sMX, sNEED, sFA, sC, sPFO = 64, 65, 66, 67, 68, 69, 70, 71, 72
NSTEP = 63
def smf(a, d, A, B): a(f"v_smfmac_f32_16x16x64_bf16 {v(d,4)}, {v(A,4)}, {r(B,8)}, v{vIDX}")
def mf32(a, d, A, B, c=None): a(f"v_mfma_f32_16x16x32_bf16 {v(d,4)}, {r(A,4)}, {r(B,4)}, {0 if c is None else v(c,4)}")
def mf16(a, d, A, B, c=None): a(f"v_mfma_f32_16x16x16_bf16 {v(d,4)}, {r(A,2)}, {r(B,2)}, {0 if c is None else v(c,4)}")
def cvt(a, d, x, y): a(f"v_cvt_pk_bf16_f32 v{d}, v{x}, v{y}")
DP = "row_mask:0xf bank_mask:0xf"
def chk(a, regs_, t):
    ms = []
    for i in range(0, len(regs_), 2):
        a(f"v_bitop3_b32 v{t+i//2}, v{regs_[i]}, v{regs_[i+1]}, s{sTAG} bitop3:0x7e"); ms.append(t+i//2)
    while len(ms) > 2:
        a(f"v_or3_b32 v{ms[0]}, v{ms[0]}, v{ms[1]}, v{ms[2]}"); ms = [ms[0]] + ms[3:]
    a(f"v_bitop3_b32 v{t}, v{ms[0]}, v{ms[-1]}, 1 bitop3:0xa8")
    a(f"v_cmp_ne_u32 vcc, 0, v{t}")
def selt_idx(a, SELT_, IDX_, c, g, t):
    a(f"v_lshrrev_b32 v{t}, 2, v{c}\nv_cmp_eq_u32 vcc, v{t}, v{g}\nv_and_b32 v{t}, 3, v{c}\nv_cndmask_b32 v{t}, 7, v{t}, vcc\nv_mov_b32 v{t+1}, 0x3f803f80")
    for p in range(4): a(f"v_cmp_eq_u32 vcc, {(p+2) % 4}, v{t}\nv_cndmask_b32 v{SELT_+p}, 0, v{t+1}, vcc")
    a(f"v_and_b32 v{t}, 1, v{c}\nv_mul_u32_u24 v{t}, 0xaaaa, v{t}\nv_add_u32 v{IDX_}, 0x4444, v{t}")

def chain(a, cfg):
    stamps = cfg.get("stamps")
    a("CHAIN:")
    a(f"s_mov_b32 s{sH}, s{sROLE}")
    srd(a, SG, 1, 9216)
    for t in range(9): a(f"s_mov_b32 s{sTILE+t}, {t*32768}")
    a(f"s_mov_b32 s{sPUBM}, 0x000f000f\ns_mov_b32 s{sPUBM+1}, 0x000f000f\ns_mov_b32 s{sQM}, 0xcccccccc\ns_mov_b32 s{sQM+1}, 0xcccccccc")
    c_, g_ = 20, 21
    P_, U_, M0_ = 22, 23, 24
    def extra():
        a(f"v_and_b32 v{c_}, 15, v0\nv_lshrrev_b32 v{g_}, 4, v0")
        a(f"s_lshl_b32 s{T0}, s{sW}, 2\nv_add_u32 v1, s{T0}, v{g_}\nv_lshlrev_b32 v2, 1, v1\nv_add_u32 v2, s{sH}, v2\nv_and_b32 v2, 31, v2\nv_lshlrev_b32 v2, 6, v2")
        a(f"v_lshl_add_u32 v2, v1, 11, v2\nv_lshl_add_u32 v2, v{c_}, 2, v2\nv_add_u32 v{P_}, {PART}, v2")
        a(f"s_lshl_b32 s{T0}, s{sW}, 5\ns_add_u32 s{T0}, s{T0}, s{sH}")
        a(f"s_lshl_b32 s{sR1}, s{T0}, 11\ns_add_u32 s{sR1}, s{sR1}, {PART-LBASE}\ns_add_u32 s{sR2}, s{sR1}, 65536")
        a(f"s_lshl_b32 s{T0}, s{T0}, 6\ns_add_u32 s{T0}, s{T0}, {MEM}")
        a(f"v_lshlrev_b32 v2, 4, v{g_}\nv_lshl_add_u32 v2, v{c_}, 2, v2\nv_add_u32 v{U_}, s{T0}, v2")
        a(f"s_lshl_b32 s{sG}, s{sW}, 11\ns_mov_b32 s{sMX}, {MEMX-LBASE}\ns_add_u32 s{sG}, s{sG}, {MEM-LBASE}")
        a("v_mov_b32 v1, 0")
        for t in range(9): a(f"buffer_store_dword v1, v{P_}, {s(WS,4)}, s{sTILE+t} offen sc1")
        a(f"s_mov_b64 exec, {s(sPUBM,2)}")
        a(f"buffer_store_dword v1, v{U_}, {s(WS,4)}, 0 offen sc1\nbuffer_store_dword v1, v{U_}, {s(WS,4)}, 0 offen offset:2048 sc1\ns_mov_b64 exec, -1")
        a(f"v_lshrrev_b32 v1, 1, v{c_}\nv_mul_u32_u24 v1, 1152, v1\nv_and_b32 v2, 1, v{c_}\nv_lshl_add_u32 v1, v2, 2, v1")
        a(f"v_lshl_add_u32 v2, v{g_}, 5, v1\nv_lshl_add_u32 v1, v{g_}, 6, v1\ns_lshl_b32 s{T0}, s{sW}, 8\ns_waitcnt lgkmcnt(0)")
        for j in range(2):
            for p in range(4): a(f"buffer_load_dword v{M0_+4*j+p}, v1, {s(SG,4)}, s{T0} offen offset:{32*j+8*p}")
        for p in range(4): a(f"buffer_load_dword v{M0_+8+p}, v2, {s(SG,4)}, 0 offen offset:{1024+8*p}")
        return 23
    load_weights(a, True, extra)
    a(f"s_barrier\ns_cmp_lg_u32 s{sW}, 0\ns_cbranch_scc1 C_NOARR")
    if cfg.get("force_slow"): a(f"s_mov_b32 s{T0}, 0x10001")
    else: a(f"s_cmp_eq_u32 s{sXCC}, 0\ns_cselect_b32 s{T0}, 1, 0x10001")
    a(f"v_mov_b32 v1, {D_CB}\nv_mov_b32 v2, s{T0}\ns_mov_b64 exec, 1\nglobal_atomic_add v1, v2, {s(DBG,2)} sc1\ns_mov_b64 exec, -1")
    a("C_NOARR:")
    for i in range(12): a(f"v_mov_b32 v{GEN+i+12}, v{M0_+i}")
    a(f"v_mov_b32 v{vWOB}, v60")
    for i in range(12): a(f"v_mov_b32 v{GEN+i}, v{GEN+i+12}")
    selt_idx(a, SELT, vIDX, c_, g_, 24)
    a(f"v_and_b32 v24, 3, v{c_}\nv_bfe_u32 v25, v{c_}, 2, 1\nv_cmp_gt_u32 vcc, 2, v24\nv_lshl_add_u32 v24, v25, 1, v24\nv_cndmask_b32 v24, 7, v24, vcc")
    a(f"v_lshrrev_b32 v25, 3, v{c_}\nv_lshlrev_b32 v25, 4, v25\nv_mov_b32 v26, 0x3f80\nv_lshlrev_b32 v25, v25, v26")
    for p in range(4): a(f"v_cmp_eq_u32 vcc, {p}, v24\nv_cndmask_b32 v{SELR+p}, 0, v25, vcc")
    a(f"v_lshrrev_b32 v24, 2, v{c_}\nv_and_b32 v25, 1, v{c_}\nv_lshl_add_u32 v24, v24, 1, v25\nv_and_b32 v25, 1, v{g_}\nv_lshl_add_u32 v24, v24, 1, v25")
    a(f"v_lshrrev_b32 v25, 1, v{g_}\nv_lshl_add_u32 v24, v25, 4, v24\ns_lshl_b32 s{T0}, s{sW}, 9\ns_add_u32 s{T0}, s{T0}, {LBASE+L_O}\nv_lshlrev_b32 v24, 4, v24\nv_add_u32 v{vOWR}, s{T0}, v24")
    a(f"v_mov_b32 v{vPST}, v{P_}\nv_mov_b32 v{vPUB}, v{U_}")
    a(f"v_lshlrev_b32 v{vPF}, 7, v0\nv_add_u32 v{vPF}, {LBASE}, v{vPF}\nv_lshlrev_b32 v0, 4, v0\nv_add_u32 v{vLB}, {LBASE}, v0")
    a(f"s_lshl_b32 s{sKV}, s{sH}, 14\ns_lshl_b32 s{T0}, s{sW}, 12\ns_add_u32 s{sKV}, s{sKV}, s{T0}\ns_add_u32 s{sKV}, s{sKV}, {KV-LBASE}")
    a(f"s_mov_b32 s{sC}, {hex(int.from_bytes(__import__('struct').pack('<f', 128**-0.5 * 1.4426950408889634), 'little'))}")
    a(f"s_mov_b32 s{sSTEP}, 0\ns_mov_b32 s{sTAG}, 0")
    wait_dbg(a, D_INIT, 1, 24)
    a(f"s_lshl_b32 s{sFA}, s{sH}, 7\nC_W01:")
    spin(a)
    a(f"buffer_load_dwordx2 v[24:25], off, {s(WS,4)}, s{sFA} sc1\ns_waitcnt vmcnt(0)\nv_min_u32 v24, v24, v25\nv_cmp_eq_u32 vcc, 0, v24\ns_cbranch_vccnz C_W01")
    wait_dbg(a, D_CB, 32, 24, mask=0xffff, keep=T1)
    for i in range(24): a(f"v_mov_b32 v{ACC+i}, 0")
    a(f"s_cmp_lt_u32 s{sH}, 16\ns_cselect_b32 s{T0}, 4, 3\ns_cmp_eq_u32 s{sW}, 3\ns_cselect_b32 s{T0}, s{T0}, s{sW}")
    a(f"s_lshr_b32 s{T1}, s{T1}, 16\ns_cmp_lg_u32 s{T1}, 0\ns_cselect_b32 s{T1}, 5, 0\ns_add_u32 s{T0}, s{T0}, s{T1}")
    for i in range(10): a(f"s_cmp_eq_u32 s{T0}, {i}\ns_cbranch_scc1 C_ENTRY{i}")
    a("s_branch END")
    for mode in range(2):
        for var in range(5): step(a, cfg, var, "sc1" if mode else "", 5*mode + var)

def step(a, cfg, var, st, vid):
    w = min(var, 3); nu = 2 if var == 4 else 1; nb = 3 if w == 3 else 2
    stamps = cfg.get("stamps")
    def stamp(i):
        if stamps: a(f"s_memtime {s(76+2*i,2)}")
    own = list(range(2*w, 2*w + nb))
    order = own + [b % 9 for b in range(2*w + nb, 2*w + 9)]
    slot = lambda i: GEN + 4*(i % 6)
    q0, k0, q1, k1, v0_, v1_ = [ACC + 4*i for i in range(6)]
    def gloads():
        for j in range(nb): a(f"buffer_load_dwordx4 {v(GEN+4*j,4)}, v{vLB}, {s(WS,4)}, s{sG} offen offset:{1024*j} sc1")
    RD = 40
    def rloads():
        for u in range(nu):
            for j in range(2): a(f"buffer_load_dwordx4 {v(RD+8*u+4*j,4)}, v{vLB}, {s(WS,4)}, s{sR1+u} offen offset:{1024*j} sc1")
    a.flush()
    a(f"C_ENTRY{vid}:")
    for j in range(nb): a(f"ds_write_b128 v{vLB}, {v(GEN+4*j,4)} offset:{1024*own[j]}")
    a(f"s_branch C_GO{vid}")
    a(f"C_LOOP{vid}:")
    gloads()
    a(f"C_GW{vid}:")
    for j in range(nb):
        a(f"s_waitcnt vmcnt({nb-1-j})\nds_write_b128 v{vLB}, {v(GEN+4*j,4)} offset:{1024*own[j]}")
    chk(a, list(range(GEN, GEN+4*nb)), GEN+12)
    a(f"s_cbranch_vccnz C_GR{vid}")
    a(f"C_GO{vid}:")
    stamp(0)
    def qk(i, js=(0, 1)):
        for j in js:
            smf(a, (q0, q1)[j], slot(i), wreg(0, order[i], j)); smf(a, (k0, k1)[j], slot(i), wreg(1, order[i], j))
    def vp(i, j): smf(a, (v0_, v1_)[j], slot(i), wreg(2, order[i], j))
    def rd(i): a(f"ds_read_b128 {v(slot(i),4)}, v{vLB} offset:{1024*order[i]}")
    smf(a, q0, slot(0), wreg(0, order[0], 0))
    a(f"s_xor_b32 s{sTAG}, s{sTAG}, -1\ns_cmp_eq_u32 s{sSTEP}, {NSTEP}\ns_cbranch_scc1 C_FIN{vid}")
    smf(a, k0, slot(0), wreg(1, order[0], 0))
    a("s_waitcnt lgkmcnt(0)\ns_barrier")
    smf(a, q1, slot(0), wreg(0, order[0], 1))
    rd(nb); rd(nb+1)
    smf(a, k1, slot(0), wreg(1, order[0], 1))
    for i in range(nb+2, 6): rd(i)
    vp(0, 0)
    for j in range(2): a(f"buffer_load_dwordx4 {v(KX+4*j,4)}, v{vLB}, {s(WS,4)}, s{sKV} offen offset:{1024*j}")
    vp(0, 1)
    for j in range(2, 4): a(f"buffer_load_dwordx4 {v(KX+4*j,4)}, v{vLB}, {s(WS,4)}, s{sKV} offen offset:{1024*j}")
    smf(a, q0, slot(1), wreg(0, order[1], 0))
    smf(a, k0, slot(1), wreg(1, order[1], 0))
    rd(6)
    a(f"s_add_u32 s{sKV}, s{sKV}, 0x80000\ns_mov_b32 exec_hi, 0")
    smf_pending = None
    a(f"buffer_load_dword v{vT}, v{vPF}, {s(WS,4)}, s{sKV} offen\ns_mov_b32 exec_hi, -1")
    smf(a, q1, slot(1), wreg(0, order[1], 1))
    a(f"s_add_u32 s{T0}, s{sSTEP}, 2\ns_min_u32 s{T0}, s{T0}, 63\ns_lshr_b32 s{sNEED}, s{T0}, 2")
    smf(a, k1, slot(1), wreg(1, order[1], 1))
    a(f"s_and_b32 s{T0}, s{T0}, 3\ns_lshl_b32 s{T0}, s{T0}, 2\ns_lshl_b32 s{sFA}, s{sH}, 7")
    vp(1, 0)
    a(f"s_add_u32 s{sFA}, s{sFA}, s{T0}\nbuffer_load_dword v{vT}, off, {s(WS,4)}, s{sFA} sc1")
    vp(1, 1)
    if nb == 2: a("s_waitcnt lgkmcnt(4)")
    smf(a, q0, slot(2), wreg(0, order[2], 0))
    rd(7)
    smf(a, k0, slot(2), wreg(1, order[2], 0))
    qk(2, (1,)); vp(2, 0); vp(2, 1)
    a("s_waitcnt lgkmcnt(2)")
    smf(a, q0, slot(3), wreg(0, order[3], 0))
    rd(8)
    smf(a, k0, slot(3), wreg(1, order[3], 0))
    qk(3, (1,)); qk(4); qk(5)
    a("s_waitcnt lgkmcnt(0)")
    qk(6); qk(7, (0,)); qk(8, (0,)); qk(7, (1,))
    stamp(1)
    vq = [(i, j) for i in range(3, 9) for j in range(2)]
    def V(n=1):
        for _ in range(n):
            if vq: vp(*vq.pop(0))
    smf(a, q1, slot(8), wreg(0, order[8], 1))
    cvt(a, 16, 16, 17); cvt(a, 17, 18, 19)
    smf(a, k1, slot(8), wreg(1, order[8], 1))
    cvt(a, 18, 20, 21); cvt(a, 19, 22, 23)
    V()
    mf32(a, 20, 16, SELT)
    cvt(a, 24, 24, 25); cvt(a, 25, 26, 27); cvt(a, 26, 28, 29); cvt(a, 27, 30, 31)
    a(f"s_mov_b64 vcc, {s(sQM,2)}")
    mf32(a, 28, 24, SELT)
    V()
    cvt(a, 16, 20, 21); cvt(a, 17, 22, 23)
    a("s_waitcnt vmcnt(4)" if False else "s_waitcnt vmcnt(2)")
    cvt(a, 18, 28, 29); cvt(a, 19, 30, 31)
    mf32(a, 24, KX+4, 16); mf32(a, 20, KX, 16); mf32(a, 28, 16, 16)
    V()
    for i in range(4): a(f"v_cndmask_b32_dpp v{20+i}, v{24+i}, v{20+i}, vcc quad_perm:[2,3,2,3] {DP}")
    a(f"v_cndmask_b32_dpp v28, v29, v28, vcc quad_perm:[2,3,2,3] {DP}")
    V()
    a(f"ds_write_b128 v{vLB}, v[20:23] offset:{L_S+1024*w}\nds_write_b32 v{vLB}, v28 offset:{L_SM+4*w}")
    V()
    a(f"s_cmp_eq_u32 s{sH}, 31\ns_cbranch_scc0 C_NX{vid}")
    a(f"v_mov_b32 v29, s{sSTEP}\ns_mov_b32 s{T0}, {MF+4*w}\ns_add_u32 s{T1}, s{sMX}, {1024*order[3]}\nbuffer_store_dword v29, off, {s(WS,4)}, s{T0} sc1")
    for j in range(nb): a(f"buffer_store_dwordx4 {v(slot(3+j),4)}, v{vLB}, {s(WS,4)}, s{T1} offen offset:{1024*j} sc1")
    a(f"s_add_u32 s{sMX}, s{sMX}, 16384")
    a(f"C_NX{vid}:")
    V(2)
    a("s_waitcnt lgkmcnt(0)\ns_barrier")
    stamp(2)
    oth = [(w+x) % 4 for x in (1, 2, 3)]
    V()
    a(f"ds_read_b128 v[16:19], v{vLB} offset:{L_S+1024*oth[0]}\nds_read_b128 v[24:27], v{vLB} offset:{L_S+1024*oth[1]}")
    V()
    a(f"ds_read_b128 v[40:43], v{vLB} offset:{L_S+1024*oth[2]}\nds_read_b128 v[44:47], v{vLB} offset:{L_SM}")
    V(3)
    assert not vq
    STG = [56, 64, 72, 48]
    fr = [(kb, ob) for kb in range(9) for ob in range(2)]
    def wrd(n, h=None):
        kb, ob = fr[n]
        off = (2*(kb//2) + ob)*4096 + (kb % 2)*2048 if kb < 8 else 8*4096 + ob*2048
        for x in ((0, 1) if h is None else (h,)): a(f"ds_read_b128 {v(STG[n % 4]+4*x,4)}, v{vWOB} offset:{off+1024*x}")
    a("s_waitcnt lgkmcnt(3)")
    for i in range(4): a(f"v_add_f32 v{20+i}, v{20+i}, v{16+i}")
    a("s_waitcnt lgkmcnt(1)")
    for i in range(4): a(f"v_add_f32 v{24+i}, v{24+i}, v{40+i}")
    a("s_waitcnt lgkmcnt(0)")
    a("v_add_f32 v44, v44, v45\nv_add_f32 v46, v46, v47")
    for i in range(4): a(f"v_add_f32 v{20+i}, v{20+i}, v{24+i}")
    a("v_add_f32 v24, v44, v46\nv_max3_f32 v16, v20, v21, v22\nv_max3_f32 v16, v16, v23, v24")
    wrd(0)
    a(f"v_max_f32_dpp v16, v16, v16 quad_perm:[2,3,0,1] {DP}\nv_mov_b32 v17, v16")
    cvt(a, 32, 32, 33); cvt(a, 33, 34, 35)
    a("v_permlane16_swap_b32 v16, v17\nv_max_f32 v16, v16, v17\nv_mov_b32 v17, v16")
    cvt(a, 34, 36, 37); cvt(a, 35, 38, 39)
    a(f"v_permlane32_swap_b32 v16, v17\nv_max_f32 v16, v16, v17\nv_mul_f32 v16, s{sC}, v16")
    for i in range(5): a(f"v_fma_f32 v{20+i}, v{20+i}, s{sC}, -v16")
    for i in range(5): a(f"v_exp_f32 v{20+i}, v{20+i}")
    cvt(a, 16, 20, 21); cvt(a, 17, 22, 23); cvt(a, 26, 24, 24)
    a(f"v_mov_b32_dpp v18, v16 quad_perm:[2,3,0,1] {DP}\nv_mov_b32_dpp v19, v17 quad_perm:[2,3,0,1] {DP}\nv_mov_b32_dpp v27, v26 quad_perm:[2,3,0,1] {DP}")
    a("v_add_f32 v20, v20, v21")
    mf32(a, 28, VX, 16)
    a("v_add_f32 v22, v22, v23\nv_add_f32 v20, v20, v24")
    mf32(a, 36, VX+4, 16)
    a("v_add_f32 v20, v20, v22")
    mf16(a, 28, 32, 26, 28)
    wrd(1)
    a(f"v_add_f32_dpp v20, v20, v20 quad_perm:[2,3,0,1] {DP}\nv_mov_b32 v21, v20")
    mf16(a, 36, 34, 26, 36)
    wrd(2)
    a("v_permlane16_swap_b32 v20, v21\nv_add_f32 v20, v20, v21\nv_mov_b32 v21, v20\nv_mov_b32 v16, 0\nv_mov_b32 v17, 0")
    a("v_permlane32_swap_b32 v20, v21\nv_add_f32 v20, v20, v21\nv_rcp_f32 v20, v20\nv_mov_b32 v18, 0")
    a(f"s_mov_b64 exec, {s(sQM,2)}")
    for b in (28, 30, 36, 38): a(f"v_pk_mul_f32 {v(b,2)}, {v(b,2)}, v[20:21] op_sel_hi:[1,0]")
    cvt(a, 40, 28, 29); cvt(a, 41, 30, 31); cvt(a, 42, 36, 37); cvt(a, 43, 38, 39)
    a(f"ds_write_b128 v{vOWR}, v[40:43]\ns_mov_b64 exec, -1")
    for i in range(19, 30): a(f"v_mov_b32 v{i}, 0")
    a("s_waitcnt lgkmcnt(0)\ns_barrier")
    stamp(3)
    a(f"ds_read_b128 v[40:43], v{vLB} offset:{L_O}\nds_read_b128 v[44:47], v{vLB} offset:{L_O+1024}")
    wrd(3)
    for i in range(30, 40): a(f"v_mov_b32 v{i}, 0")
    acc = lambda kb: ACC + 4*(kb % 6)
    post = []
    def outstanding(n):
        return 2*min(2, 17 - n) if n > 0 else 0
    for n in range(18):
        kb, ob = fr[n]
        if n == 0: a("s_waitcnt lgkmcnt(3)")
        elif n == 1: a("s_waitcnt lgkmcnt(2)")
        elif n >= 3: a(f"s_waitcnt lgkmcnt({2*min(2, 17-n)})")
        smf(a, acc(kb), 40 + 4*ob, STG[n % 4])
        if 1 <= n and n + 3 < 18: wrd(n + 3)
        if n >= 4 and ob == 0:
            t = kb - 2
            pass
        if ob == 1 and kb >= 1:
            x = acc(kb-1)
            if kb >= 2:
                y = acc(kb-2)
                a(f"buffer_store_dword v{y+1}, v{vPST}, {s(WS,4)}, s{sTILE+kb-2} offen {st}")
                if kb - 2 < 3:
                    a(f"v_mov_b32 v{y+2}, 0\nv_mov_b32 v{y+1}, 0")
            a(f"v_add_f32 v{x}, v{x}, v{x+1}\nv_add_f32 v{x+2}, v{x+2}, v{x+3}")
        if ob == 0 and kb >= 2:
            y = acc(kb-2)
            cvt(a, y+1, y, y+2)
            if kb - 2 < 3: a(f"v_mov_b32 v{y}, 0\nv_mov_b32 v{y+3}, 0")
            a(f"v_bfi_b32 v{y+1}, 1, s{sTAG}, v{y+1}")
    for kb in (7, 8):
        y = acc(kb)
        if kb == 8: a(f"v_add_f32 v{y}, v{y}, v{y+1}\nv_add_f32 v{y+2}, v{y+2}, v{y+3}")
        cvt(a, y+1, y, y+2)
        a(f"v_bfi_b32 v{y+1}, 1, s{sTAG}, v{y+1}")
        a(f"buffer_store_dword v{y+1}, v{vPST}, {s(WS,4)}, s{sTILE+kb} offen {st}")
    stamp(4)
    zl = [i for i in range(16, 40) if i not in (21, 25)] + [21, 25]
    d1 = cfg.get("d1", (0, 4, 12, 22))[w]
    for i in zl[:d1]: a(f"v_mov_b32 v{i}, 0")
    rloads()
    a(f"C_RW{vid}:")
    RA = 56
    for u in range(nu):
        a(f"s_waitcnt vmcnt({2*(nu-u)-1})")
        mf32(a, RA+4*u, SELR, RD+8*u)
        a(f"s_waitcnt vmcnt({2*(nu-u)-2})")
        mf32(a, RA+4*u, SELR, RD+8*u+4, RA+4*u)
    chk(a, list(range(RD, RD+8*nu)), 64)
    a(f"s_cbranch_vccnz C_RR{vid}")
    for q in (4, 8):
        for u in range(nu):
            for i in range(2): a(f"v_add_f32_dpp v{RA+4*u+i}, v{RA+4*u+i}, v{RA+4*u+i} row_ror:{q} {DP}")
    a(f"s_mov_b64 exec, {s(sPUBM,2)}")
    for u in range(nu):
        cvt(a, 72+u, RA+4*u, RA+4*u+1)
        a(f"v_bfi_b32 v{72+u}, 1, s{sTAG}, v{72+u}")
    for u in range(nu): a(f"buffer_store_dword v{72+u}, v{vPUB}, {s(WS,4)}, 0 offen offset:{2048*u} {st}")
    a("s_mov_b64 exec, -1")
    stamp(5)
    a(f"C_FW{vid}:\nv_cmp_ge_u32 vcc, s{sNEED}, v{vT}\ns_cbranch_vccnz C_FR{vid}")
    for i in zl[d1:]: a(f"v_mov_b32 v{i}, 0")
    a(f"s_add_u32 s{sSTEP}, s{sSTEP}, 1")
    if cfg.get("d2ack", 1): a("s_waitcnt vmcnt(0)")
    a(f"s_branch C_LOOP{vid}")
    a.flush()
    a(f"C_GR{vid}:")
    spin(a); gloads(); a(f"s_branch C_GW{vid}")
    a(f"C_RR{vid}:")
    a("s_nop 7")
    spin(a); rloads(); a(f"s_branch C_RW{vid}")
    a(f"C_FR{vid}:")
    spin(a)
    a(f"buffer_load_dword v{vT}, off, {s(WS,4)}, s{sFA} sc1\ns_waitcnt vmcnt(0)\ns_branch C_FW{vid}")
    a(f"C_FIN{vid}:")
    if stamps:
        a("s_waitcnt lgkmcnt(0)")
        a(f"s_lshl_b32 s{T0}, s{sH}, 2\ns_add_u32 s{T0}, s{T0}, {w}\ns_lshl_b32 s{T0}, s{T0}, 5\ns_add_u32 s{T0}, s{T0}, 0x20000")
        for i in range(6): a(f"v_mov_b32 v{40+i}, s{76+2*i}")
        a(f"v_mov_b32 v46, s{sBUD}\nv_mov_b32 v47, 0")
        a(f"buffer_store_dwordx4 v[40:43], off, {s(WS,4)}, s{T0}\nbuffer_store_dwordx4 v[44:47], off, {s(WS,4)}, s{T0} offset:16")
    a(f"s_cmp_eq_u32 s{sH}, 31\ns_cbranch_scc0 END")
    a(f"v_mov_b32 v{vT}, s{sSTEP}\ns_mov_b32 s{T0}, {MF+4*w}\nbuffer_store_dword v{vT}, off, {s(WS,4)}, s{T0} sc1")
    a(f"s_add_u32 s{T1}, s{sMX}, {1024*own[0]}")
    for j in range(nb): a(f"buffer_store_dwordx4 {v(GEN+4*j,4)}, v{vLB}, {s(WS,4)}, s{T1} offen offset:{1024*j} sc1")
    a(f"v_mov_b32 v36, {NSTEP+1}\ns_waitcnt vmcnt(0)\nbuffer_store_dword v36, off, {s(WS,4)}, s{T0} sc1\ns_branch END")
```

```python
from asm import *
KVF, OF, MF = 0, 4096, 4608
FLAGBYTES = 8192
CF = 0x10000
MEM, PART, MEMX, YT, KV, OX = 0x40000, 0x80000, 0x100000, 0x200000, 0x1000000, 0x3000000
WSBYTES = 0x4000000
D_CT, D_CB, D_T, D_INIT, D_S = 0, 4, 128, 192, 196
WS, DBG = 8, 12
SWQ, SWK, SWV, SWO, SX, SG = 16, 20, 24, 28, 32, 36
sROLE, sH, sW, sSTEP, sTAG, sBUD, sXCC = 40, 41, 42, 43, 44, 45, 46
T0, T1, T2, T3 = 2, 3, 14, 15
BUDGET = 400000
def srd(a, d, slot, nbytes):
    a(f"s_load_dwordx2 {s(d,2)}, s[0:1], {slot*8}")
    a(f"s_mov_b32 s{d+2}, {nbytes}\ns_mov_b32 s{d+3}, 0x00020000")
def spin(a):
    a(f"s_sub_u32 s{sBUD}, s{sBUD}, 1\ns_cbranch_scc1 END")
def dcol(kb, ga):
    return 128*(kb//2) + 32*ga + 16*(kb % 2) if kb < 8 else 512 + 16*ga
def wreg(M, kb, j): return 80 + 8*(M*18 + kb*2 + j)

def prologue(a, force_slow=False):
    srd(a, WS, 17, WSBYTES)
    a(f"s_load_dwordx2 {s(DBG,2)}, s[0:1], 128")
    srd(a, SWQ, 2, 4718592); srd(a, SWK, 3, 4718592); srd(a, SWV, 4, 4718592); srd(a, SWO, 5, 4718592)
    srd(a, SX, 0, 2359296)
    a(f"s_getreg_b32 s{sXCC}, hwreg(HW_REG_XCC_ID, 0, 3)")
    a(f"v_lshrrev_b32 v1, 6, v0\nv_readfirstlane_b32 s{sW}, v1\nv_and_b32 v0, 63, v0\ns_mov_b32 s{sBUD}, {BUDGET}")
    a(f"s_waitcnt lgkmcnt(0)\ns_cmp_lg_u32 s{sW}, 0\ns_cbranch_scc1 TK_DONE")
    a(f"s_mov_b32 s{T0}, s{sXCC}\ns_mov_b32 s{T1}, 8\nv_mov_b32 v2, 1\ns_mov_b64 exec, 1")
    a("TK_LOOP:")
    a(f"s_lshl_b32 s{T2}, s{T0}, 2\ns_add_u32 s{T2}, s{T2}, {D_T}\ns_cmp_eq_u32 s{T0}, 0\ns_cselect_b32 s{T2}, {D_CT}, s{T2}")
    a(f"v_mov_b32 v1, s{T2}\nglobal_atomic_add v3, v1, v2, {s(DBG,2)} sc0 sc1\ns_waitcnt vmcnt(0)")
    a(f"v_readfirstlane_b32 s{T2}, v3\ns_lshl_b32 s{sROLE}, s{T0}, 5\ns_add_u32 s{sROLE}, s{sROLE}, s{T2}")
    a(f"s_cmp_lt_u32 s{T2}, 32\ns_cbranch_scc1 TK_GOT")
    a(f"s_mov_b32 s{sROLE}, 256\ns_sub_u32 s{T1}, s{T1}, 1\ns_mov_b32 s{T0}, s{T1}\ns_cbranch_scc0 TK_LOOP")
    a("TK_GOT:")
    a(f"v_mov_b32 v1, 0\nv_mov_b32 v3, s{sROLE}\nds_write_b32 v1, v3\ns_mov_b64 exec, -1\ns_waitcnt lgkmcnt(0)")
    a("TK_DONE:")
    a(f"s_barrier\nv_mov_b32 v1, 0\nds_read_b32 v3, v1\ns_waitcnt lgkmcnt(0)\nv_readfirstlane_b32 s{sROLE}, v3\ns_barrier")
    a(f"s_cmp_ge_u32 s{sROLE}, 256\ns_cbranch_scc1 END")

def wait_dbg(a, off, val, vt, mask=None, keep=None):
    L = a.newlabel("WD")
    a(f"v_mov_b32 v{vt}, {off}")
    a(f"{L}:")
    spin(a)
    a(f"global_load_dword v{vt+1}, v{vt}, {s(DBG,2)} sc1\ns_waitcnt vmcnt(0)\nv_readfirstlane_b32 s{T0}, v{vt+1}")
    if keep is not None: a(f"s_mov_b32 s{keep}, s{T0}")
    if mask: a(f"s_and_b32 s{T0}, s{T0}, {mask}")
    a(f"s_cmp_lt_u32 s{T0}, {val}\ns_cbranch_scc1 {L}")

def load_weights(a, with_wo, extra=None):
    vW, vO, vO8, vTR, vWB = 56, 57, 58, 59, 60
    a(f"v_lshrrev_b32 v1, 2, v0\nv_and_b32 v2, 3, v0")
    a(f"s_lshl_b32 s{T0}, s{sH}, 8\ns_lshl_b32 s{T1}, s{sW}, 6\ns_add_u32 s{T0}, s{T0}, s{T1}")
    a(f"v_lshlrev_b32 v{vW}, 13, v1\nv_lshl_add_u32 v{vW}, v2, 4, v{vW}\nv_add_u32 v{vW}, s{T0}, v{vW}")
    sLB = 47
    a(f"s_mul_i32 s{sLB}, s{sW}, 36864")
    if with_wo:
        a("v_and_b32 v3, 1, v1\nv_bfe_u32 v4, v1, 1, 1\nv_lshl_add_u32 v3, v4, 2, v3\nv_bfe_u32 v4, v1, 2, 1\nv_lshl_add_u32 v3, v4, 1, v3\nv_bfe_u32 v4, v1, 3, 1\nv_lshl_add_u32 v3, v4, 4, v3")
        a(f"s_mul_i32 s{T0}, s{sH}, 147456\ns_add_u32 s{T2}, s{T0}, s{T1}")
        a(f"v_mul_u32_u24 v4, 1152, v3\nv_lshl_add_u32 v{vO}, v2, 4, v4\nv_add_u32 v{vO}, s{T2}, v{vO}")
        a(f"s_lshr_b32 s{T1}, s{T1}, 1\ns_add_u32 s{T0}, s{T0}, s{T1}\ns_add_u32 s{T0}, s{T0}, 1024")
        a(f"v_lshrrev_b32 v5, 1, v2\nv_mul_u32_u24 v5, {64*1152}, v5\nv_and_b32 v6, 1, v2\nv_lshl_add_u32 v5, v6, 4, v5\nv_add3_u32 v{vO8}, v4, v5, s{T0}")
    a(f"v_lshrrev_b32 v3, 4, v0\nv_lshlrev_b32 v3, 9, v3\nv_and_b32 v4, 3, v1\nv_lshl_add_u32 v3, v4, 6, v3\nv_lshl_add_u32 v3, v2, 3, v3\nv_add_u32 v{vTR}, s{sLB}, v3")
    a(f"v_lshlrev_b32 v3, 4, v0\nv_add_u32 v{vWB}, s{sLB}, v3")
    st = []
    if with_wo:
        for n in range(9):
            park = wreg(2, n+1, 0) if n < 8 else 64
            if n < 8: st.append((SWO, vO, [(64*(n % 2) + 32*(i//2) + 8*(i % 2))*1152 + 256*(n//2) for i in range(4)], park))
            else: st.append((SWO, vO8, [(32*(i//2) + 8*(i % 2))*1152 for i in range(4)], park))
    for M in range(3):
        for kb in range(9): st.append(((SWQ, SWK, SWV)[M], vW, [dcol(kb, i)*8192 for i in range(4)], wreg(M, kb, 0)))
    N = len(st)
    def issue(n):
        sr, va, so, _ = st[n]
        a(f"s_add_u32 m0, s{sLB}, {(n % 9)*4096}")
        for i in range(4):
            assert so[i] - 1024*i >= 0
            a(f"s_mov_b32 s{T0}, {so[i] - 1024*i}\nbuffer_load_dwordx4 v{va}, {s(sr,4)}, s{T0} offen offset:{1024*i} lds")
    for n in range(9): issue(n)
    nx = extra() if extra else 0
    for n in range(N):
        a(f"s_waitcnt vmcnt({4*min(8, N-1-n) + (nx if n < 9 else 0)})")
        d = st[n][3]; sl = (n % 9)*4096
        for j in range(2):
            for q in range(4):
                a(f"ds_read_b64_tr_b16 {r(d + 8*j + 2*q, 2)}, v{vTR} offset:{sl + (32*(q//2) + 4*(q % 2))*64 + 32*j}")
        if with_wo and n >= 27:
            p = st[n-27][3]
            for x in range(4): a(f"ds_write_b128 v{vWB}, {r(p + 4*x, 4)} offset:{sl + 1024*x}")
        if n + 9 < N:
            a("s_waitcnt lgkmcnt(0)")
            issue(n + 9)
    a("s_waitcnt lgkmcnt(0)")
```

```python
from common import *
from chain import mf32, cvt
import struct
F = lambda x: hex(struct.unpack('<I', struct.pack('<f', x))[0])
sI = 47
GT = YT + 72*32768
UL, RL, TL, PL = 0, 61440, 128000, 141312
def arrive(a, off):
    L = a.newlabel("ARR")
    a(f"s_waitcnt vmcnt(0)\ns_barrier\ns_cmp_lg_u32 s{sW}, 0\ns_cbranch_scc1 {L}")
    a(f"v_mov_b32 v1, {off}\nv_mov_b32 v2, 1\ns_mov_b64 exec, 1\nglobal_atomic_add v1, v2, {s(DBG,2)} sc1\ns_mov_b64 exec, -1")
    a(f"{L}:")
def expbf(a, x, t, sHI, sLO):
    a(f"v_mul_f32 v{t}, s{sHI}, v{x}\nv_rndne_f32 v{t+1}, v{t}\nv_sub_f32 v{t}, v{t}, v{t+1}\nv_fma_f32 v{t}, v{x}, s{sLO}, v{t}")
    a(f"v_exp_f32 v{t}, v{t}\nv_cvt_i32_f32 v{t+1}, v{t+1}\nv_ldexp_f32 v{t}, v{t}, v{t+1}")
    cvt(a, t, t, t); a(f"v_lshlrev_b32 v{x}, 16, v{t}")

def ssm(a, cfg):
    SA, SB, SC_, SD_, SE, SF = 16, 20, 24, 36, 48, 52
    sLO_, sHI_, sD, sCC, sCNT, sLH, sLL = 56, 57, 58, 60, 61, 62, 63
    a("S_ROLE:")
    for d, slot, nb in ((SA, 8, 147456), (SB, 9, 147456), (SC_, 10, 147456), (SD_, 11, 147456), (SE, 12, 1152), (SF, 13, 1152)): srd(a, d, slot, nb)
    XR = 200
    vTID, vUT = 1, 2
    a(f"s_lshl_b32 s{T0}, s{sW}, 6\nv_add_u32 v{vTID}, s{T0}, v0\nv_mul_u32_u24 v3, 9216, v{vTID}\ns_lshl_b32 s{T0}, s{sI}, 4\ns_add_u32 s{T1}, s{T0}, 4608")
    a(f"s_lshl_b32 s{T2}, s{sI}, 2\ns_add_u32 s{T2}, s{T2}, s{sW}\ns_lshl_b32 s{T3}, s{T2}, 2\ns_lshl_b32 s{T2}, s{T2}, 9")
    a(f"v_lshlrev_b32 v4, 3, v0\nv_lshrrev_b32 v5, 5, v0\nv_lshlrev_b32 v6, 1, v5\ns_waitcnt lgkmcnt(0)")
    a(f"buffer_load_ushort v16, v6, {s(SE,4)}, s{T3} offen")
    for i, sr in enumerate((SA, SB, SC_, SD_)): a(f"buffer_load_dwordx2 {v(18+2*i,2)}, v4, {s(sr,4)}, s{T2} offen")
    a(f"buffer_load_ushort v17, v6, {s(SF,4)}, s{T3} offen")
    for j in range(8): a(f"buffer_load_dwordx4 {v(XR+4*j,4)}, v3, {s(SX,4)}, s{T0 if j < 4 else T1} offen offset:{1152*(j % 4)}")
    a(f"s_mov_b32 s{sLO_}, 0x05040100\ns_mov_b32 s{sHI_}, 0x07060302\ns_mov_b32 s{sLH}, 0x3fb8aa00\ns_mov_b32 s{sLL}, {F(1.4426950408889634 - struct.unpack('<f', struct.pack('<I', 0x3fb8aa00))[0])}")
    for i in range(4): a(f"v_mov_b32 v{32+i}, 0")
    a(f"v_lshlrev_b32 v7, 4, v{vTID}\nv_cmp_gt_u32 vcc, 160, v{vTID}\ns_and_saveexec_b64 s[64:65], vcc")
    for ch in range(8): a(f"ds_write_b128 v7, v[32:35] offset:{UL + 7680*ch}")
    a("s_mov_b64 exec, 0xffff")
    vR, vTB, vPR = 8, 9, 10
    a(f"s_mul_i32 s{T0}, s{sW}, 16640\ns_add_u32 s66, s{T0}, {RL}\ns_mul_i32 s{T0}, s{sW}, 3328\ns_add_u32 s67, s{T0}, {TL}\ns_lshl_b32 s{T0}, s{sW}, 12\ns_add_u32 s68, s{T0}, {PL}")
    a(f"v_lshrrev_b32 v7, 2, v0\nv_mul_u32_u24 v7, 4160, v7\nv_and_b32 v11, 3, v0\nv_lshl_add_u32 v7, v11, 4, v7\nv_add_u32 v7, s66, v7\nds_write_b128 v7, v[32:35] offset:4096")
    a(f"v_mul_u32_u24 v7, 208, v0\nv_add_u32 v7, s67, v7\nds_write_b128 v7, v[32:35] offset:192\ns_mov_b64 exec, -1")
    a(f"v_lshrrev_b32 v7, 2, v{vTID}\nv_mul_u32_u24 v7, 80, v7\nv_and_b32 v11, 3, v0\nv_lshl_add_u32 v{vUT}, v11, 4, v7")
    GA = 160
    a(f"v_lshlrev_b32 v7, 5, v0\nv_sub_u32 v7, 2047, v7")
    for e in range(35):
        x = GA + e
        a(f"v_subrev_u32 v11, {e}, v7\nv_cmp_gt_i32 vcc, 0, v11\nv_cvt_f32_i32 v11, v11")
        cvt(a, 11, 11, 11)
        a(f"v_bfe_u32 v12, v11, 7, 8\nv_lshlrev_b32 v11, 16, v11\nv_cvt_u32_f32 v11, v11\nv_subrev_u32 v12, 134, v12\nv_med3_i32 v12, v12, 0, 3")
        a(f"v_lshrrev_b32 v13, 4, v11\nv_bfi_b32 v13, 7, v11, v13\nv_lshrrev_b32 v13, v12, v13\nv_lshl_add_u32 v13, v12, 3, v13")
        a(f"v_bfe_u32 v11, v11, 3, 4\nv_mul_u32_u24 v11, 52, v11\nv_add_u32 v11, v11, v13")
        if e >= 32: a(f"v_cndmask_b32 v11, v11, 48, vcc")
        a(f"v_lshl_add_u32 v{x}, v11, 2, s67")
    c_, g_ = 14, 15
    POS = 40
    a(f"v_and_b32 v{c_}, 15, v0\nv_lshrrev_b32 v{g_}, 4, v0")
    for t in range(3):
        a(f"v_add_u32 v11, {16*t}, v{c_}\nv_lshrrev_b32 v12, 3, v11\nv_subrev_u32 v12, 1, v12\nv_med3_i32 v12, v12, 0, 3\nv_lshlrev_b32 v13, 3, v12\nv_sub_u32 v11, v11, v13\nv_lshlrev_b32 v11, v12, v11")
        a(f"v_lshrrev_b32 v12, 3, v11\nv_and_b32 v11, 7, v11\nv_lshl_add_u32 v11, v12, 7, v11\nv_cvt_f32_u32 v{POS+t}, v11")
    a(f"v_lshlrev_b32 v11, 3, v{c_}\nv_cvt_f32_u32 v{POS+3}, v11")
    a(f"v_mul_u32_u24 v11, 208, v{c_}\nv_lshl_add_u32 v11, v{g_}, 4, v11\nv_add_u32 v{vTB}, s67, v11\nv_lshl_add_u32 v{vPR}, v{g_}, 4, s68")
    a(f"v_lshl_add_u32 v{vR}, v0, 6, s66")
    vA0, vA1, vB, vE = 44, 45, 46, 47
    a(f"v_and_b32 v11, 3, v0\nv_sub_u32 v11, 3, v11\nv_mul_u32_u24 v11, 4160, v11\nv_bfe_u32 v12, v0, 2, 3\nv_lshlrev_b32 v12, 3, v12\nv_sub_u32 v11, v11, v12\nv_lshl_add_u32 v11, v5, 4, v11")
    a(f"s_add_u32 s{T0}, s66, {4088-1984}\nv_add_u32 v{vA0}, s{T0}, v11\nv_subrev_u32 v{vA1}, 2048, v{vA0}")
    a(f"v_and_b32 v11, 31, v0\nv_mul_u32_u24 v11, 80, v11\ns_mul_i32 s{T0}, s{sW}, 15360\nv_add_u32 v11, s{T0}, v11\nv_lshl_add_u32 v{vB}, v5, 4, v11\nv_lshl_add_u32 v{vE}, v5, 3, v11")
    a("s_waitcnt vmcnt(8)\nv_lshlrev_b32 v16, 16, v16\nv_lshlrev_b32 v17, 16, v17")
    expbf(a, 16, 11, sLH, sLL)
    a(f"v_readlane_b32 s{sD}, v17, 0\nv_readlane_b32 s{sD+1}, v17, 32\nv_add_f32 v17, v16, v16\nv_lshl_add_u32 v7, v0, 6, s68")
    for j in range(4):
        for i in range(4):
            a(f"v_lshlrev_b32 v{28+i}, 16, v{18+2*i+j//2}" if j % 2 == 0 else f"v_and_b32 v{28+i}, 0xffff0000, v{18+2*i+j//2}")
        expbf(a, 28, 11, sLH, sLL)
        a(f"v_mul_f32 v28, v28, v16\nv_mul_f32 v29, v29, v16\nv_mul_f32 v32, {F(-1.4426950408889634)}, v28\nv_mul_f32 v33, 0.15915494, v29\nv_mul_f32 v34, v30, v17\nv_mul_f32 v35, v31, v17")
        a(f"ds_write_b128 v7, v[32:35] offset:{16*j}")
    a(f"s_mov_b32 s{sCC}, 0")
    a.flush()
    a("S_CH:")
    KA = 48
    SET = (64, 80); PRM = (16, 20)
    a(f"s_waitcnt lgkmcnt(0)\nds_read_b128 {v(PRM[0],4)}, v{vPR}\ns_mov_b32 s{sCNT}, 16")
    for i in range(12): a(f"v_mov_b32 v{KA+i}, 0")
    for i in range(8): a(f"v_mov_b32 v{SET[1]+i}, 0")
    def kmf(st):
        return [f"v_mfma_f32_16x16x4_f32 {v(KA+4*t,4)}, v{st+4*x+t}, v{st+4*x+3}, {v(KA+4*t,4)}" for x in range(2) for t in range(3)]
    a.flush()
    a("S_KL:")
    for u in range(2):
        st, p = SET[u], PRM[u]; m, f = 24, 28
        a(f"s_waitcnt lgkmcnt(0)\nds_read_b128 {v(PRM[1-u],4)}, v{vPR} offset:{64*(u+1)}")
        mm = kmf(SET[1-u]); al = []
        for t in range(4): al += [f"v_mul_f32 v{f+t}, v{p+1}, v{POS+t}", f"v_mul_f32 v{m+t}, v{p}, v{POS+t}"]
        for t in range(4): al += [f"v_fract_f32 v{f+t}, v{f+t}"]
        for t in (3, 0, 1, 2): al += [f"v_exp_f32 v{m+t}, v{m+t}", f"v_cos_f32 v{st+8+t}, v{f+t}", f"v_sin_f32 v{f+t}, v{f+t}"]
        al += [f"v_mul_f32 v{st+11}, v{st+11}, v{m+3}", f"v_mul_f32 v{f+3}, v{f+3}, v{m+3}"]
        for t in range(3): al += [f"v_mul_f32 v{st+t}, v{st+8+t}, v{m+t}", f"v_mul_f32 v{st+4+t}, v{f+t}, v{m+t}"]
        al += [f"v_mul_f32 v{st+3}, v{st+11}, v{p+2}", f"v_mul_f32 v{st+7}, v{st+11}, v{p+3}", f"v_fma_f32 v{st+3}, -v{f+3}, v{p+3}, v{st+3}", f"v_fma_f32 v{st+7}, -v{f+3}, v{p+2}, -v{st+7}"]
        at = {2: 0, 10: 1, 14: 2, 17: 3, 20: 4, 23: 5}
        for n, x in enumerate(al):
            if n in at: a(mm[at[n]])
            a(x)
    a(f"v_add_u32 v{vPR}, 128, v{vPR}\ns_sub_u32 s{sCNT}, s{sCNT}, 1\ns_cmp_lg_u32 s{sCNT}, 0\ns_cbranch_scc1 S_KL")
    for x in kmf(SET[1]): a(x)
    a(f"s_cmp_lg_u32 s{sCC}, 0\ns_cbranch_scc1 S_NOU\ns_waitcnt vmcnt(0)")
    for ch in range(8):
        b = 96 + 4*(ch % 2)
        for t in range(4): a(f"v_perm_b32 v{b+t}, v{XR+8*t+4+ch//2}, v{XR+8*t+ch//2}, s{sLO_ + ch % 2}")
        a(f"ds_write_b128 v{vUT}, {v(b,4)} offset:{UL + 7680*ch + 2560}")
    a("s_waitcnt lgkmcnt(0)\ns_barrier")
    a("S_NOU:\ns_nop 15\ns_nop 3")
    for t in range(3): a(f"ds_write_b128 v{vTB}, {v(KA+4*t,4)} offset:{64*t}")
    a("s_waitcnt lgkmcnt(0)")
    G = 64
    for e in range(35): a(f"ds_read_b32 v{G+e}, v{GA+e}")
    a("s_waitcnt lgkmcnt(0)")
    for sg in range(4):
        for q in range(4):
            b = 104 + 4*((4*sg + q) % 4)
            for t in range(4): cvt(a, b+t, G+8*q+2*t+sg, G+8*q+2*t+sg+1)
            a(f"ds_write_b128 v{vR}, {v(b,4)} offset:{4160*sg + 16*q}")
    a("s_waitcnt lgkmcnt(0)")
    Y = (48, 64, 80); FR = lambda n: 96 + 16*(n % 3)
    def rdg(n):
        dl, kk = n//2, n % 2; o = (1984 - 64*dl + 32*kk)//8
        a(f"ds_read2_b64 {v(FR(n),4)}, v{vA0} offset0:{o} offset1:{o+1}\nds_read_b128 {v(FR(n)+4,4)}, v{vB} offset:{(64-dl)*80 + 32*kk}")
        a(f"ds_read_b128 {v(FR(n)+8,4)}, v{vB} offset:{(32-dl)*80 + 32*kk}\nds_read2_b64 {v(FR(n)+12,4)}, v{vA1} offset0:{o} offset1:{o+1}")
    def m32(d, A, B, first): a(f"v_mfma_f32_32x32x16_bf16 {v(d,16)}, {v(A,4)}, {v(B,4)}, {0 if first else v(d,16)}")
    rdg(0); rdg(1)
    for n in range(64):
        a(f"s_waitcnt lgkmcnt({4 if n < 63 else 0})")
        m32(Y[1], FR(n), FR(n)+4, n == 0)
        if n + 2 < 64: rdg(n+2)
        m32(Y[0], FR(n), FR(n)+8, n == 0); m32(Y[2], FR(n)+12, FR(n)+8, n == 0)
    for ct in range(2):
        for q in range(4): a(f"ds_read_b64 {v(16+8*ct+2*q,2)}, v{vE} offset:{(32+32*ct)*80 + 16*q}")
    for i in range(16): a(f"v_add_f32 v{Y[1]+i}, v{Y[1]+i}, v{Y[2]+i}")
    a("s_waitcnt lgkmcnt(0)")
    for ct in range(2):
        for q in range(4):
            u = 16+8*ct+2*q; y = Y[ct]+4*q
            a(f"v_lshlrev_b32 v96, 16, v{u}\nv_and_b32 v97, 0xffff0000, v{u}\nv_lshlrev_b32 v98, 16, v{u+1}\nv_and_b32 v99, 0xffff0000, v{u+1}")
            for i in range(4): a(f"v_fmac_f32 v{y+i}, s{sD}, v{96+i}")
            cvt(a, u, y, y+1); cvt(a, u+1, y+2, y+3)
            a(f"ds_write_b64 v{vE}, {v(u,2)} offset:{(32+32*ct)*80 + 16*q}")
    a(f"v_add_u32 v{vB}, 7680, v{vB}\nv_add_u32 v{vE}, 7680, v{vE}\ns_mov_b32 s{sD}, s{sD+1}\ns_add_u32 s{sCC}, s{sCC}, 1\ns_cmp_lt_u32 s{sCC}, 2")
    a.flush()
    a("s_cbranch_scc1 S_CH")
    a("s_waitcnt lgkmcnt(0)\ns_barrier")
    for ch in range(8): a(f"ds_read_b128 {v(64+4*ch,4)}, v{vUT} offset:{UL + 7680*ch + 2560}")
    a(f"v_mul_u32_u24 v11, 144, v0\nv_add_u32 v11, s66, v11\nv_lshrrev_b32 v12, 3, v0\nv_mul_u32_u24 v12, 144, v12\nv_and_b32 v13, 7, v0\nv_lshl_add_u32 v12, v13, 4, v12\nv_add_u32 v12, s66, v12")
    a(f"s_lshl_b32 s{T0}, s{sI}, 15\ns_lshl_b32 s{T1}, s{sW}, 13\ns_add_u32 s{T0}, s{T0}, s{T1}\ns_add_u32 s{T0}, s{T0}, {YT}\ns_add_u32 s{T1}, s{T0}, 4096\nv_lshlrev_b32 v13, 4, v0\ns_waitcnt lgkmcnt(0)")
    for j in range(8):
        b = 96 + 4*(j % 2)
        for m in range(4): a(f"v_perm_b32 v{b+m}, v{64+8*m+4+j//2}, v{64+8*m+j//2}, s{sLO_ + j % 2}")
        a(f"ds_write_b128 v11, {v(b,4)} offset:{16*j}")
    a("s_waitcnt lgkmcnt(0)")
    for i in range(8): a(f"ds_read_b128 {v(64+4*i,4)}, v12 offset:{1152*i}")
    for i in range(8): a(f"s_waitcnt lgkmcnt({7-i})\nbuffer_store_dwordx4 {v(64+4*i,4)}, v13, {s(WS,4)}, s{T0 if i < 4 else T1} offen offset:{1024*(i % 4)} sc1")
    arrive(a, D_S)
    a("s_branch O_ROLE")

def gate(a, cfg):
    a("G_ROLE:")
    srd(a, 16, 14, 1152)
    a(f"s_sub_u32 s{T0}, s{sI}, 72\ns_lshl_b32 s{T0}, s{T0}, 2\ns_add_u32 s{T0}, s{T0}, s{sW}\ns_lshl_b32 s{T2}, s{T0}, 7\ns_add_u32 s{T2}, s{T2}, {GT}\ns_mul_i32 s{T0}, s{T0}, 36864\ns_add_u32 s{T1}, s{T0}, 18432")
    a(f"v_and_b32 v1, 15, v0\nv_lshrrev_b32 v2, 4, v0\nv_lshlrev_b32 v2, 4, v2\nv_mul_u32_u24 v3, 1152, v1\nv_add_u32 v3, v3, v2\nv_lshlrev_b32 v1, 2, v1\ns_waitcnt lgkmcnt(0)")
    for n in range(18):
        a(f"buffer_load_dwordx4 {v(16+12*n,4)}, v2, s[16:19], 0 offen offset:{64*n}")
        for tt in range(2): a(f"buffer_load_dwordx4 {v(20+12*n+4*tt,4)}, v3, {s(SX,4)}, s{(T0, T1)[tt]} offen offset:{64*n}")
    for n in range(18):
        a(f"s_waitcnt vmcnt({51-3*n})")
        for tt in range(2): mf32(a, 8+4*tt, 16+12*n, 20+12*n+4*tt, 8+4*tt if n else None)
    a("s_mov_b64 exec, 0xffff")
    for tt in range(2):
        x = 8+4*tt
        a(f"v_mul_f32 v{x}, {F(-1.4426950408889634)}, v{x}\nv_exp_f32 v{x}, v{x}\nv_add_f32 v{x}, 1.0, v{x}\nv_rcp_f32 v{x}, v{x}\ns_nop 0")
        a(f"buffer_store_dword v{x}, v1, {s(WS,4)}, s{T2} offen offset:{64*tt} sc1")
    a("s_mov_b64 exec, -1")
    arrive(a, D_S)

def outp(a, cfg):
    a("OUTP:")
    a(f"s_sub_u32 s{sI}, s{sROLE}, 160\ns_cmp_lt_u32 s{sI}, 72\ns_cbranch_scc1 S_ROLE\ns_cmp_lt_u32 s{sI}, 88\ns_cbranch_scc1 G_ROLE")
    a(f"s_cmp_lg_u32 s{sI}, 88\ns_cbranch_scc1 O_ROLE")
    for i in range(4): a(f"v_mov_b32 v{4+i}, 0")
    a(f"v_lshlrev_b32 v3, 4, v0\ns_lshl_b32 s{T0}, s{sW}, 11")
    for i in range(2): a(f"buffer_store_dwordx4 v[4:7], v3, {s(WS,4)}, s{T0} offen offset:{1024*i} sc1")
    arrive(a, D_INIT)
    a("s_branch O_ROLE")
    ssm(a, cfg)
    gate(a, cfg)
    a.flush()
    a("O_ROLE:")
    if cfg.get("noO"): a("s_endpgm"); return
    SO = 16
    sSET, sCG, sLB, sOXO, sIT, sTK, sRED = 48, 49, 50, 51, 52, 53, 54
    srd(a, SO, 15, 2359296)
    a(f"s_mul_i32 s{sSET}, s{sI}, 43\ns_lshr_b32 s{sSET}, s{sSET}, 9\ns_mul_i32 s{T0}, s{sSET}, 12\ns_sub_u32 s{sCG}, s{sI}, s{T0}\ns_mul_i32 s{sLB}, s{sW}, 36864")
    a(f"s_mul_i32 s{T0}, s{sCG}, 96\ns_mul_i32 s{T1}, s{sW}, {32*36864}\ns_add_u32 s{T0}, s{T0}, s{T1}")
    for q in range(3):
        a(f"v_add_u32 v4, {64*q}, v0\nv_mul_u32_u24 v5, 171, v4\nv_lshrrev_b32 v5, 10, v5\nv_mul_u32_u24 v6, {1152-96}, v5\nv_lshl_add_u32 v6, v0, 4, v6\nv_add_u32 v{1+q}, s{T0}, v6")
    vTR = 7
    a(f"v_lshrrev_b32 v4, 2, v0\nv_mul_u32_u24 v4, 96, v4\nv_and_b32 v5, 3, v0\nv_lshl_add_u32 v4, v5, 3, v4\nv_add_u32 v{vTR}, s{sLB}, v4")
    W = lambda n, t: 128 + 12*n + 4*t
    def issue(n):
        a(f"s_add_u32 m0, s{sLB}, {(n % 12)*3072}\ns_mov_b32 s{T0}, {36864*n}")
        for q in range(3): a(f"buffer_load_dwordx4 v{1+q}, {s(SWO,4)}, s{T0} offen offset:{1024*q} lds")
    for n in range(12): issue(n)
    for n in range(32):
        a(f"s_waitcnt vmcnt({3*min(11, 31-n)})")
        for t in range(3):
            for hf in range(2): a(f"ds_read_b64_tr_b16 {r(W(n,t)+2*hf,2)}, v{vTR} offset:{(n % 12)*3072 + 1536*hf + 32*t}")
        if n + 12 < 32:
            a("s_waitcnt lgkmcnt(0)"); issue(n+12)
    vL, vF, vY, vG, vO, vRW, vRR = 1, 2, 3, 4, 5, 6, 7
    a("s_waitcnt lgkmcnt(0)")
    a(f"s_lshr_b32 s{T0}, s{sSET}, 1\ns_lshl_b32 s{T0}, s{T0}, 7\ns_lshl_b32 s{T1}, s{sW}, 5\ns_add_u32 s{T0}, s{T0}, s{T1}\ns_add_u32 s{T0}, s{T0}, {OF}")
    a(f"v_and_b32 v8, 7, v0\nv_lshl_add_u32 v{vF}, v8, 2, s{T0}\nv_lshlrev_b32 v{vL}, 4, v0")
    a(f"s_lshl_b32 s{sOXO}, s{sSET}, 17\ns_lshl_b32 s{T1}, s{sW}, 15\ns_add_u32 s{sOXO}, s{sOXO}, s{T1}\ns_add_u32 s{sOXO}, s{sOXO}, {OX}\ns_lshl_b32 s{sTK}, s{sSET}, 4\ns_mov_b32 s{sIT}, 0")
    a(f"v_and_b32 v8, 15, v0\nv_lshrrev_b32 v9, 4, v0\nv_lshlrev_b32 v{vG}, 2, v8\nv_add_u32 v{vG}, {GT}, v{vG}")
    a(f"s_min_u32 s{T2}, s{sW}, 2\ns_mul_i32 s{T0}, s{sCG}, 3\ns_add_u32 s{T0}, s{T0}, s{T2}\ns_lshl_b32 s{T1}, s{T0}, 16\ns_add_u32 s{T1}, s{T1}, {YT}\ns_lshl_b32 s{T0}, s{T0}, 5")
    a(f"v_lshrrev_b32 v10, 1, v9\nv_lshlrev_b32 v10, 15, v10\nv_lshl_add_u32 v10, v8, 4, v10\nv_and_b32 v11, 1, v9\nv_lshl_add_u32 v10, v11, 3, v10\nv_add_u32 v{vY}, s{T1}, v10")
    a(f"v_mul_u32_u24 v10, 1152, v8\nv_lshl_add_u32 v10, v9, 3, v10\nv_add_u32 v{vO}, s{T0}, v10")
    a(f"s_lshl_b32 s{T0}, s{sW}, 10\nv_add_u32 v{vRW}, s{T0}, v{vL}\ns_lshl_b32 s{T0}, s{T2}, 12\nv_add_u32 v{vRR}, s{T0}, v{vL}")
    wait_dbg(a, D_INIT, 1, 8)
    wait_dbg(a, D_S, 88, 8)
    a("s_barrier")
    a.flush()
    AC, FR = 16, lambda n: 32 + 4*(n % 24)
    a("O_LOOP:")
    a(f"s_lshl_b32 s{T0}, s{sTK}, 4\ns_lshl_b32 s{T1}, s{sTK}, 2")
    a(f"buffer_load_dwordx2 v[10:11], v{vY}, {s(WS,4)}, s{T0} offen sc1\nbuffer_load_dword v12, v{vG}, {s(WS,4)}, s{T1} offen sc1")
    a("O_W:")
    spin(a)
    a(f"buffer_load_dword v8, v{vF}, {s(WS,4)}, 0 offen sc1\ns_waitcnt vmcnt(0)\nv_cmp_ge_u32 vcc, s{sIT}, v8\ns_cbranch_vccnz O_W")
    def ld(n):
        if n % 4 == 0: a(f"s_add_u32 s{T0}, s{sOXO}, {1024*n}")
        a(f"buffer_load_dwordx4 {v(FR(n),4)}, v{vL}, {s(WS,4)}, s{T0} offen offset:{1024*(n % 4)} sc1")
    for n in range(24): ld(n)
    for n in range(32):
        a(f"s_waitcnt vmcnt({23 if n == 0 else min(22, 31-n)})")
        for t in range(3):
            mf32(a, AC+4*t, W(n,t), FR(n), AC+4*t if n else None)
            if t == 0 and 1 <= n <= 8: ld(n+23)
    a(f"s_add_u32 s{sOXO}, s{sOXO}, 0x100000\ns_mul_i32 s{T0}, s{sTK}, 1152\ns_add_u32 s{sTK}, s{sTK}, 128\ns_add_u32 s{sIT}, s{sIT}, 1")
    for t in range(3): a(f"ds_write_b128 v{vRW}, {v(AC+4*t,4)} offset:{4096*t}")
    a(f"v_xor_b32 v{vRW}, 0x4000, v{vRW}\ns_waitcnt lgkmcnt(0)\ns_barrier\ns_cmp_eq_u32 s{sW}, 3\ns_cbranch_scc1 O_NX")
    for x in range(4): a(f"ds_read_b128 {v(32+4*x,4)}, v{vRR} offset:{1024*x}")
    a(f"v_xor_b32 v{vRR}, 0x4000, v{vRR}\nv_sub_f32 v13, 1.0, v12\nv_lshlrev_b32 v16, 16, v10\nv_and_b32 v17, 0xffff0000, v10\nv_lshlrev_b32 v18, 16, v11\nv_and_b32 v19, 0xffff0000, v11")
    for i in range(4): a(f"v_mul_f32 v{16+i}, v13, v{16+i}")
    a("s_waitcnt lgkmcnt(0)")
    for i in range(4): a(f"v_add_f32 v{32+i}, v{32+i}, v{36+i}\nv_add_f32 v{40+i}, v{40+i}, v{44+i}\nv_add_f32 v{32+i}, v{32+i}, v{40+i}\nv_fmac_f32 v{16+i}, v12, v{32+i}")
    cvt(a, 14, 16, 17); cvt(a, 15, 18, 19)
    a(f"buffer_store_dwordx2 v[14:15], v{vO}, {s(SO,4)}, s{T0} offen")
    a("O_NX:")
    a(f"s_cmp_lt_u32 s{sIT}, 16")
    a.flush()
    a("s_cbranch_scc1 O_LOOP")
```

```python
from common import *
from chain import mf32, mf16, cvt, selt_idx, DP
import struct
XB, PK, MA, KM, VM = 0, 73728, 122880, 132096, 136192
vL, vX1, vX2, vXB, vIDX, vA, vB, vC = 0, 1, 2, 3, 4, 5, 6, 7
SELT = 8; vM, vMW = 12, 13
sR, sN, sXO, sPAR, sKVO, sC, sMXO, sOXO, sWK = 47, 48, 49, 50, 51, 52, 53, 54, 55
sMASK = 60
def smf(a, d, A, B): a(f"v_smfmac_f32_16x16x64_bf16 {v(d,4)}, {v(A,4)}, {r(B,8)}, v{vIDX}")
def proj(a, cfg):
    a("PROJ:")
    a(f"s_sub_u32 s{T0}, s{sROLE}, 32\ns_lshr_b32 s{sH}, s{T0}, 5\ns_lshl_b32 s{sH}, s{sH}, 3\ns_and_b32 s{T1}, s{T0}, 7\ns_add_u32 s{sH}, s{sH}, s{T1}")
    a(f"s_bfe_u32 s56, s{T0}, 0x20003")
    load_weights(a, False)
    a(f"s_mov_b32 s{sR}, s56\ns_barrier")
    c_, g_ = 20, 21
    a(f"v_and_b32 v{c_}, 15, v0\nv_lshrrev_b32 v{g_}, 4, v0")
    a(f"s_and_b32 s{T0}, s{sW}, 1\ns_lshl_b32 s{T0}, s{T0}, 4\ns_lshr_b32 s{T1}, s{sW}, 1\ns_lshl_b32 s{T1}, s{T1}, 6")
    a(f"v_add_u32 v22, s{T0}, v{c_}\nv_mul_u32_u24 v23, 1152, v22\nv_add_u32 v23, s{T1}, v23")
    a(f"v_lshl_add_u32 v{vX2}, v{g_}, 4, v23\nv_lshrrev_b32 v24, 1, v{g_}\nv_lshlrev_b32 v24, 5, v24\nv_add3_u32 v{vX1}, v{vX2}, v24, s{T1}\nv_add_u32 v{vX2}, 1024, v{vX2}")
    a(f"s_mul_i32 s{sXO}, s{sR}, 36864\ns_lshl_b32 s{sWK}, s{sW}, 10\ns_mov_b32 s{sPAR}, 0")
    def xload():
        for kb in range(9):
            a(f"s_add_u32 m0, s{T2}, {kb*4096}")
            if kb < 8: a(f"s_add_u32 s{T0}, s{sXO}, {256*(kb//2) + 32*(kb % 2)}\nbuffer_load_dwordx4 v{vX1}, {s(SX,4)}, s{T0} offen lds")
            else: a(f"buffer_load_dwordx4 v{vX2}, {s(SX,4)}, s{sXO} offen lds")
        a(f"s_add_u32 s{sXO}, s{sXO}, {4*36864}")
    a(f"s_mov_b32 s{T2}, s{sWK}")
    xload()
    a(f"v_lshlrev_b32 v24, 2, v{g_}\nv_sub_u32 v22, v22, v24")
    for i in range(8): a(f"v_cmp_le_i32 {s(sMASK+2*i,2)}, {16*(i//4) + i % 4}, v22")
    selt_idx(a, SELT, vIDX, c_, g_, 24)
    a(f"v_lshlrev_b32 v{vL}, 4, v0\nv_add_u32 v{vM}, {MA}, v{vL}\nv_add_u32 v{vMW}, s{sWK}, v{vM}")
    a(f"s_lshl_b32 s{T0}, s{sR}, 5\ns_add_u32 s{T0}, s{T0}, s{sH}\ns_lshl_b32 s{T0}, s{T0}, 14\ns_lshl_b32 s{T1}, s{sW}, 12\ns_add_u32 s{T0}, s{T0}, s{T1}\ns_add_u32 s{sKVO}, s{T0}, {KV}")
    a(f"s_lshl_b32 s{sMXO}, s{sR}, 14\ns_add_u32 s{sMXO}, s{sMXO}, {MEMX}")
    a(f"s_lshl_b32 s{T0}, s{sR}, 18\ns_and_b32 s{T1}, s{sW}, 1\ns_lshl_b32 s{T1}, s{T1}, 17\ns_add_u32 s{T0}, s{T0}, s{T1}\ns_lshl_b32 s{T1}, s{sH}, 12\ns_add_u32 s{T0}, s{T0}, s{T1}")
    a(f"s_lshr_b32 s{T1}, s{sW}, 1\ns_lshl_b32 s{T1}, s{T1}, 11\ns_add_u32 s{T0}, s{T0}, s{T1}\ns_add_u32 s{sOXO}, s{T0}, {OX}")
    a(f"s_mov_b32 s{sC}, {hex(struct.unpack('<I', struct.pack('<f', 128**-0.5 * 1.4426950408889634))[0])}\ns_mov_b32 s{sN}, 0")
    wait_dbg(a, D_INIT, 1, 24)
    a("s_barrier")
    a.flush()
    a("P_LOOP:")
    a(f"s_cmp_eq_u32 s{sN}, 16\ns_cbranch_scc1 P_ATT")
    a(f"s_mul_i32 s{T1}, s{sPAR}, 36864\nv_add_u32 v{vXB}, s{T1}, v{vL}")
    X = lambda n, tt: 64 + 8*(n % 2) + 4*tt
    def xr(n):
        for tt in range(2): a(f"ds_read_b128 {v(X(n,tt),4)}, v{vXB} offset:{n*2048 + tt*1024}")
    xr(0)
    a(f"s_cmp_eq_u32 s{sN}, 15\ns_cbranch_scc1 P_NOX\ns_sub_u32 s{T2}, 36864, s{T1}\ns_add_u32 s{T2}, s{T2}, s{sWK}")
    xload()
    a("P_NOX:")
    for n in range(18):
        kb, hf = n//2, n % 2
        a("s_waitcnt lgkmcnt(0)")
        first = True
        for M in (1, 2, 0):
            for tt in range(2):
                for j in range(2):
                    W = wreg(M, kb, j) + 4*hf
                    if M < 2: d = 16 + 16*M + 8*tt + 4*j; mf32(a, d, W, X(n,tt), d if n else None)
                    else: d = 48 + 8*j + 4*tt; mf32(a, d, X(n,tt), W, d if n else None)
                    if first and n < 17: xr(n+1)
                    first = False
    a(f"s_mul_i32 s{T1}, s{sPAR}, 24576\ns_add_u32 s{T1}, s{T1}, {PK}\ns_add_u32 s{T1}, s{T1}, s{sWK}\nv_add_u32 v{vA}, s{T1}, v{vL}")
    for f in (2, 3, 4, 5, 0, 1):
        b = 16 + 8*f
        for i in range(4): cvt(a, b+i, b+2*i, b+2*i+1)
        if f >= 2: a(f"buffer_store_dwordx4 {v(b,4)}, v{vL}, {s(WS,4)}, s{sKVO} offen offset:{1024*(f-2)} sc1")
        a(f"ds_write_b128 v{vA}, {v(b,4)} offset:{4096*f}")
    a(f"s_add_u32 s{sKVO}, s{sKVO}, 0x200000\ns_add_u32 s{T1}, s{sN}, 1\nv_mov_b32 v{vB}, s{T1}")
    a(f"s_lshl_b32 s{T0}, s{sH}, 5\ns_add_u32 s{T0}, s{T0}, s{sR}\ns_lshl_b32 s{T0}, s{T0}, 2")
    a(f"s_waitcnt vmcnt(0) lgkmcnt(0)\ns_barrier\ns_cmp_lg_u32 s{sW}, 0\ns_cbranch_scc1 P_NF1")
    a(f"s_mov_b64 exec, 1\nbuffer_store_dword v{vB}, off, {s(WS,4)}, s{T0} sc1\ns_mov_b64 exec, -1")
    a("P_NF1:")
    a(f"s_cmp_eq_u32 s{sN}, 0\ns_cbranch_scc1 P_NEXT")
    a("P_ATT:")
    a(f"s_lshl_b32 s{T1}, s{sN}, 2\ns_add_u32 s{T1}, s{T1}, s{sR}\ns_sub_u32 s{T1}, s{T1}, 4\ns_mov_b32 s{T0}, {MF}")
    for i in range(16, 32): a(f"v_mov_b32 v{i}, 0")
    a(f"s_xor_b32 s{T2}, s{sPAR}, 1\ns_mul_i32 s{T2}, s{T2}, 24576\ns_add_u32 s{T2}, s{T2}, {PK}\nv_add_u32 v{vA}, s{T2}, v{vL}")
    a(f"s_and_b32 s{T2}, s{sW}, 1\ns_lshl_b32 s{T2}, s{T2}, 12\nv_add_u32 v{vB}, s{T2}, v{vA}")
    a(f"s_lshr_b32 s{T2}, s{sW}, 1\ns_lshl_b32 s{T2}, s{T2}, 11\nv_add_u32 v{vC}, s{T2}, v{vA}\nv_add_u32 v14, s{T2}, v{vM}")
    a("P_WM:")
    spin(a)
    a(f"buffer_load_dwordx4 v[32:35], off, {s(WS,4)}, s{T0} sc1\ns_waitcnt vmcnt(0)")
    a(f"v_min3_u32 v32, v32, v33, v34\nv_min_u32 v32, v32, v35\nv_cmp_ge_u32 vcc, s{T1}, v32\ns_cbranch_vccnz P_WM")
    a(f"s_add_u32 m0, s{sWK}, {MA}\ns_add_u32 s{T0}, s{sMXO}, s{sWK}\nbuffer_load_dwordx4 v{vL}, {s(WS,4)}, s{T0} offen sc1 lds")
    a(f"s_add_u32 m0, s{sWK}, {MA+4096}\ns_add_u32 s{T0}, s{T0}, 4096\nbuffer_load_dwordx4 v{vL}, {s(WS,4)}, s{T0} offen sc1 lds")
    a(f"s_add_u32 s{T0}, s{sMXO}, 8192\nbuffer_load_dwordx4 v[64:67], v{vL}, {s(WS,4)}, s{T0} offen sc1")
    a(f"s_add_u32 s{sMXO}, s{sMXO}, 65536\ns_waitcnt vmcnt(0)\ns_barrier")
    for kb in range(8): a(f"ds_read_b128 {v(32+4*kb,4)}, v{vM} offset:{1024*kb}")
    for M in (1, 2):
        for kb in (8, 0, 1, 2, 3, 4, 5, 6, 7):
            if M == 1 and kb < 8: a(f"s_waitcnt lgkmcnt({7-kb})")
            for j in range(2): smf(a, 16 + 8*(M-1) + 4*j, 32+4*kb, wreg(M, kb, j))
            if M == 2 and kb == 0:
                for i in range(4): cvt(a, 16+i, 16+2*i, 17+2*i)
            if M == 2 and kb == 1:
                mf16(a, 68, 16, SELT+2); mf16(a, 72, 18, SELT+2)
            if M == 2 and kb == 3:
                for i in range(4): cvt(a, 68+i, 68+2*i, 69+2*i)
                a(f"ds_write_b128 v{vMW}, v[68:71] offset:{KM-MA}")
    S0, S1, SM = 16, 20, 76
    for ec in range(4):
        a(f"ds_read_b128 {v(32+4*ec,4)}, v{vB} offset:{1024*ec}")
    for ec in range(3):
        for tt in range(2): a(f"ds_read_b128 {v(48+8*ec+4*tt,4)}, v{vA} offset:{4096*(2+tt) + 1024*ec}")
    for i in range(4): cvt(a, 24+i, 24+2*i, 25+2*i)
    a(f"ds_write_b128 v{vMW}, v[24:27] offset:{VM-MA}")
    a(f"ds_read_b128 v[72:75], v{vA} offset:{4096*2 + 3072}\nds_read_b128 v[28:31], v{vA} offset:{4096*3 + 3072}")
    a("s_waitcnt lgkmcnt(0)\ns_barrier")
    for ec in range(4):
        for tt in range(2):
            A = 48+8*ec+4*tt if (ec, tt) != (3, 1) else 28
            mf32(a, (S0, S1)[tt], A, 32+4*ec, (S0, S1)[tt] if ec else None)
        if ec == 1:
            for x in range(2): a(f"ds_read_b128 {v(48+4*x,4)}, v{vM} offset:{KM-MA + 1024*x}")
        if ec == 2:
            for x in range(2, 4): a(f"ds_read_b128 {v(48+4*x,4)}, v{vM} offset:{KM-MA + 1024*x}")
    for ec in range(4):
        a(f"s_waitcnt lgkmcnt({3-ec})")
        mf32(a, SM, 48+4*ec, 32+4*ec, SM if ec else None)
    for x in range(2):
        for j in range(2): a(f"ds_read_b128 {v(32+8*x+4*j,4)}, v{vC} offset:{4096*(4+j) + 1024*x}")
        a(f"ds_read_b128 {v(64+4*x,4)}, v14 offset:{VM-MA + 1024*x}")
    a("v_mov_b32 v26, 0xce6e6b28")
    for i in range(8): a(f"v_cndmask_b32 v{16+i}, v26, v{16+i}, {s(sMASK+2*i,2)}")
    a(f"v_mov_b32 v24, v{SM}\nv_mov_b32 v25, v{SM+1}")
    a("v_max3_f32 v26, v16, v17, v18\nv_max3_f32 v27, v19, v20, v21\nv_max3_f32 v26, v26, v22, v23\nv_max3_f32 v27, v27, v24, v25\nv_max_f32 v26, v26, v27\nv_mov_b32 v27, v26")
    a("v_permlane16_swap_b32 v26, v27\nv_max_f32 v26, v26, v27\nv_mov_b32 v27, v26")
    a(f"v_permlane32_swap_b32 v26, v27\nv_max_f32 v26, v26, v27\nv_mul_f32 v26, s{sC}, v26")
    for i in range(10): a(f"v_fma_f32 v{16+i}, v{16+i}, s{sC}, -v26")
    for i in range(10): a(f"v_exp_f32 v{16+i}, v{16+i}")
    for i in range(4): cvt(a, 28+i, 16+2*i, 17+2*i)
    cvt(a, 26, 24, 24); cvt(a, 27, 25, 25)
    a("s_waitcnt lgkmcnt(0)")
    for x in range(2):
        for j in range(2): mf32(a, 48+8*x+4*j, 32+8*x+4*j, 28)
    for x in range(2):
        for j in range(2): mf16(a, 48+8*x+4*j, 64+4*x+2*j, 26, 48+8*x+4*j)
    for i in range(5): a(f"v_add_f32 v{16+i}, v{16+i}, v{21+i}")
    a("v_add_f32 v16, v16, v17\nv_add_f32 v18, v18, v19\nv_add_f32 v16, v16, v20\nv_add_f32 v16, v16, v18\nv_mov_b32 v17, v16")
    a("v_permlane16_swap_b32 v16, v17\nv_add_f32 v16, v16, v17\nv_mov_b32 v17, v16")
    a("v_permlane32_swap_b32 v16, v17\nv_add_f32 v16, v16, v17\nv_rcp_f32 v16, v16")
    for x in range(2):
        b = 48 + 8*x
        for i in range(4): a(f"v_pk_mul_f32 {v(b+2*i,2)}, {v(b+2*i,2)}, v[16:17] op_sel_hi:[1,0]")
        for i in range(4): cvt(a, b+i, b+2*i, b+2*i+1)
        a(f"buffer_store_dwordx4 {v(b,4)}, v{vL}, {s(WS,4)}, s{sOXO} offen offset:{1024*x} sc1")
    a(f"s_add_u32 s{sOXO}, s{sOXO}, 0x100000\nv_mov_b32 v{vB}, s{sN}")
    a(f"s_lshl_b32 s{T0}, s{sR}, 5\ns_add_u32 s{T0}, s{T0}, s{sH}\ns_lshl_b32 s{T0}, s{T0}, 2\ns_add_u32 s{T0}, s{T0}, {OF}")
    a(f"s_waitcnt vmcnt(0)\ns_barrier\ns_cmp_lg_u32 s{sW}, 0\ns_cbranch_scc1 P_NEXT")
    a(f"s_mov_b64 exec, 1\nbuffer_store_dword v{vB}, off, {s(WS,4)}, s{T0} sc1\ns_mov_b64 exec, -1")
    a("P_NEXT:")
    a(f"s_xor_b32 s{sPAR}, s{sPAR}, 1\ns_add_u32 s{sN}, s{sN}, 1\ns_cmp_le_u32 s{sN}, 16")
    a.flush()
    a("s_cbranch_scc1 P_LOOP\ns_endpgm")
```

```python
import sys
from common import *
import chain as C
NAME = "gated_mix__memory_aug_recurrent_mem_tr__ssm_conv_s4d__prompt"
def body(cfg):
    a = Asm(); CFG.clear(); CFG.update(cfg)
    roles = cfg.get("roles", "CPO")
    prologue(a)
    a(f"s_cmp_lt_u32 s{sROLE}, 32\ns_cbranch_scc1 {'CHAIN' if 'C' in roles else 'END'}")
    a(f"s_cmp_lt_u32 s{sROLE}, 160\ns_cbranch_scc1 {'PROJ' if 'P' in roles else 'END'}")
    a(f"s_branch {'OUTP' if 'O' in roles else 'END'}")
    if "C" in roles: C.chain(a, cfg)
    a.flush()
    a("END:"); rtdump(a); a("EXIT:\ns_endpgm")
    if "P" in roles:
        import proj; proj.proj(a, cfg)
    if "O" in roles:
        import outp; outp.outp(a, cfg)
    return a
def full(cfg):
    ref = open(f"cdna_kernels/{NAME}.s.ref").read()
    head = ref[:ref.index("; Override launch")]
    a = body(cfg)
    return head + f"""; @launch grid=(256,1,1) block=(256,1,1) lds=163840
.amdgcn_target "amdgcn-amd-amdhsa--gfx950"
.text
.globl {NAME}_kernel
.p2align 8
.type {NAME}_kernel,@function
{NAME}_kernel:
{a.text()}
s_endpgm
.section .rodata,"a"
.p2align 6
.amdhsa_kernel {NAME}_kernel
  .amdhsa_next_free_vgpr 512
  .amdhsa_next_free_sgpr 102
  .amdhsa_accum_offset 256
  .amdhsa_group_segment_fixed_size 0
  .amdhsa_kernarg_size 144
  .amdhsa_user_sgpr_count 2
  .amdhsa_user_sgpr_kernarg_segment_ptr 1
  .amdhsa_system_sgpr_workgroup_id_x 1
.end_amdhsa_kernel
"""
if __name__ == "__main__":
    cfg = eval(sys.argv[2]) if len(sys.argv) > 2 else {}
    open(sys.argv[1], "w").write(full(cfg))
```

```python
from common import *
LBASE = 147456
L_S, L_SM, L_O = 9216, 13312, 14336
vLB, vPST, vPUB, vOWR, vIDX, vPF, vWOB, vT = 0, 1, 2, 3, 4, 5, 6, 7
SELT, SELR = 8, 56
ACC = 16
KX, VX, GEN = 40, 48, 56
sTILE = 50
sPUBM, sQM = 60, 62
sR1, sR2, sG, sKV, sMX, sNEED, sFA, sFLAG, sC, sEX = 64, 65, 66, 67, 68, 69, 70, 71, 72, 74
sMASK, sLIM, sMB, sMF = 59, 47, 48, 49
sODD, sPF, sG8 = 4, 5, 6
sSEL, sPUB2 = 24, 34
SMX = 36
OREG = {8: 0, 1: 1, 5: 2}
LDSST = [(3, 0), (3, 2), (3, 3), (3, 4), (3, 6), (3, 7), (2, 0), (2, 1), (2, 2)]
import struct
F32 = lambda x: hex(struct.unpack('<I', struct.pack('<f', x))[0])
class Q:
    def __init__(s, a, name): s.a, s.n, s.q = a, name, []
    def add(s, tag, text):
        for l in text.split("\n"): s.a(l); s.q.append(tag)
    def wait(s, *tags):
        i = max([k for k, x in enumerate(s.q) if x in tags], default=-1)
        if i < 0: return
        n = len(s.q) - 1 - i; assert n <= (15 if s.n == "lgkmcnt" else 63)
        s.a(f"s_waitcnt {s.n}({n})"); s.q = s.q[i+1:]
    def drain(s): s.a(f"s_waitcnt {s.n}(0)"); s.q = []
NSTEP = 63
def smf(a, d, A, B, ix=f"v{vIDX}"): a(f"v_smfmac_f32_16x16x64_bf16 {v(d,4)}, {v(A,4)}, {r(B,8)}, {ix}")
def mf32(a, d, A, B, c=None): a(f"v_mfma_f32_16x16x32_bf16 {v(d,4)}, {r(A,4)}, {r(B,4)}, {0 if c is None else v(c,4)}")
def mf16(a, d, A, B, c=None): a(f"v_mfma_f32_16x16x16_bf16 {v(d,4)}, {r(A,2)}, {r(B,2)}, {0 if c is None else v(c,4)}")
def cvt(a, d, x, y): a(f"v_cvt_pk_bf16_f32 v{d}, v{x}, v{y}")
DP = "row_mask:0xf bank_mask:0xf"
def chkl(regs_, t):
    L = [f"v_bitop3_b32 v{t}, v{regs_[0]}, v{regs_[1]}, s{sTAG} bitop3:0x7e"]
    for x in regs_[2:]: L.append(f"v_bitop3_b32 v{t}, v{x}, v{t}, s{sTAG} bitop3:0xde")
    return L + [f"v_and_b32 v{t}, s{sMASK}, v{t}", f"v_cmp_ne_u32 vcc, 0, v{t}"]
def chk(a, regs_, t):
    ms = []
    for i in range(0, len(regs_), 2):
        a(f"v_bitop3_b32 v{t+i//2}, v{regs_[i]}, v{regs_[i+1]}, s{sTAG} bitop3:0x7e"); ms.append(t+i//2)
    while len(ms) > 2:
        a(f"v_or3_b32 v{ms[0]}, v{ms[0]}, v{ms[1]}, v{ms[2]}"); ms = [ms[0]] + ms[3:]
    a(f"v_bitop3_b32 v{t}, v{ms[0]}, v{ms[-1]}, 1 bitop3:0xa8")
    a(f"v_cmp_ne_u32 vcc, 0, v{t}")
def selt_idx(a, SELT_, IDX_, c, g, t):
    a(f"v_lshrrev_b32 v{t}, 2, v{c}\nv_cmp_eq_u32 vcc, v{t}, v{g}\nv_and_b32 v{t}, 3, v{c}\nv_cndmask_b32 v{t}, 7, v{t}, vcc\nv_mov_b32 v{t+1}, 0x3f803f80")
    for p in range(4): a(f"v_cmp_eq_u32 vcc, {(p+2) % 4}, v{t}\nv_cndmask_b32 v{SELT_+p}, 0, v{t+1}, vcc")
    a(f"v_and_b32 v{t}, 1, v{c}\nv_mul_u32_u24 v{t}, 0xaaaa, v{t}\nv_add_u32 v{IDX_}, 0x4444, v{t}")

def chain(a, cfg):
    a("CHAIN:")
    a(f"s_mov_b32 s{sH}, s{sROLE}\ns_getreg_b32 s{sXCC}, hwreg(HW_REG_XCC_ID, 0, 4)")
    srd(a, SG, 1, 9216)
    for t in range(9): a(f"s_mov_b32 s{sTILE+t}, {t*32768}")
    a(f"s_mov_b32 s{sPUBM}, 0x000f000f\ns_mov_b32 s{sPUBM+1}, 0x000f000f\ns_mov_b32 s{sQM}, 0xcccccccc\ns_mov_b32 s{sQM+1}, 0xcccccccc")
    c_, g_ = 20, 21
    P_, U_, F_, M0_ = 22, 23, 19, 24
    R = cfg.get("nrep", 16)
    def extra():
        a(f"v_and_b32 v{c_}, 15, v0\nv_lshrrev_b32 v{g_}, 4, v0")
        a(f"s_lshl_b32 s{T0}, s{sW}, 2\nv_add_u32 v1, s{T0}, v{g_}\nv_lshlrev_b32 v2, 1, v1\nv_add_u32 v2, s{sH}, v2\nv_and_b32 v2, 31, v2\nv_lshlrev_b32 v2, 6, v2")
        a(f"v_lshl_add_u32 v2, v1, 11, v2\nv_lshl_add_u32 v2, v{c_}, 2, v2\nv_add_u32 v{P_}, {PART}, v2")
        a(f"s_lshl_b32 s{T0}, s{sW}, 5\ns_add_u32 s{T0}, s{T0}, s{sH}")
        a(f"s_lshl_b32 s{sR1}, s{T0}, 11\ns_add_u32 s{sR1}, s{sR1}, {PART-LBASE}\ns_and_b32 s{T1}, s{sH}, 15\ns_lshl_b32 s{sR2}, s{T1}, 11\ns_add_u32 s{sR2}, s{sR2}, {PART-LBASE+8*32768}")
        a(f"s_lshl_b32 s{T0}, s{T0}, 6\ns_add_u32 s{T0}, s{T0}, {MEM}")
        a(f"v_lshlrev_b32 v2, 4, v{g_}\nv_lshl_add_u32 v2, v{c_}, 2, v2\nv_add_u32 v{U_}, s{T0}, v2")
        a(f"s_lshl_b32 s{sG}, s{sW}, 11\ns_add_u32 s{sG}, s{sG}, {MEM-LBASE}")
        a("v_mov_b32 v1, 0")
        for t in range(9): a(f"buffer_store_dword v1, v{P_}, {s(WS,4)}, s{sTILE+t} offen sc1")
        a(f"s_mov_b64 exec, {s(sPUBM,2)}")
        a(f"buffer_store_dword v1, v{U_}, {s(WS,4)}, 0 offen sc1\nbuffer_store_dword v1, v{U_}, {s(WS,4)}, 0 offen offset:2048 sc1\ns_mov_b64 exec, -1")
        a(f"v_lshrrev_b32 v1, 1, v{c_}\nv_mul_u32_u24 v1, 1152, v1\nv_and_b32 v2, 1, v{c_}\nv_lshl_add_u32 v1, v2, 2, v1")
        a(f"v_lshl_add_u32 v2, v{g_}, 5, v1\nv_lshl_add_u32 v1, v{g_}, 6, v1\ns_lshl_b32 s{T0}, s{sW}, 8\ns_waitcnt lgkmcnt(0)")
        for j in range(2):
            for p in range(4): a(f"buffer_load_dword v{M0_+4*j+p}, v1, {s(SG,4)}, s{T0} offen offset:{32*j+8*p}")
        for p in range(4): a(f"buffer_load_dword v{M0_+8+p}, v2, {s(SG,4)}, 0 offen offset:{1024+8*p}")
        return 23
    regst = [((3, n), wreg(2, k, 0)) for n, k in OREG.items()] + [((M, kb), wreg(M, kb, 0)) for M in range(3) for kb in range(9) if (M, kb) not in LDSST]
    load_weights(a, LDSST, regst, extra)
    rt(a, 2)
    a(f"s_mul_i32 s{T3}, s{sXCC}, s{sXCC}\ns_lshl_b32 s{T3}, s{T3}, 10\ns_add_u32 s{T3}, s{T3}, s{sXCC}\ns_lshl_b32 s{T3}, s{T3}, 8\ns_add_u32 s{T3}, s{T3}, 1")
    a(f"s_cmp_lg_u32 s{sW}, 0\ns_cbranch_scc1 C_NOARR")
    a(f"v_mov_b32 v1, {D_CB}\nv_mov_b32 v2, s{T3}\ns_mov_b64 exec, 1\nglobal_atomic_add v1, v2, {s(DBG,2)} sc1\ns_mov_b64 exec, -1")
    a("C_NOARR:")
    a(f"s_load_dwordx2 {s(SMX,2)}, s[0:1], 136\ns_cmp_lt_u32 s{sH}, 9\ns_cselect_b32 s{SMX+2}, {WSBYTES}, 0\ns_mov_b32 s{SMX+3}, 0x00020000")
    a(f"s_min_u32 s{T0}, s{sH}, 8\ns_lshl_b32 s{sMB}, s{T0}, 10\ns_add_u32 s{sMX}, s{sMB}, {MEMX-LBASE}\ns_lshl_b32 s{sMF}, s{T0}, 2\ns_add_u32 s{sMF}, s{sMF}, {MF}")
    a(f"v_mov_b32 v{vWOB}, v54\nv_lshlrev_b32 v18, 4, v0\nv_add_u32 v18, {LBASE}, v18\ns_lshl_b32 s{T0}, s{sW}, 11\nv_add_u32 v17, s{T0}, v18")
    a(f"ds_write_b128 v17, {v(M0_,4)}\nds_write_b128 v17, {v(M0_+4,4)} offset:1024\nds_write_b128 v18, {v(M0_+8,4)} offset:8192")
    a(f"s_add_u32 s{sEX}, s{sG}, 16384\ns_mov_b32 s{T0}, {MEM-LBASE+8192+16384}")
    for j in range(3): a(f"buffer_store_dwordx4 {v(M0_+4*j,4)}, v18, {s(WS,4)}, s{sEX if j < 2 else T0} offen offset:{1024*(j % 2)} sc1")
    a(f"s_cmp_eq_u32 s{sW}, 0\ns_cselect_b32 s{sEX}, s{T0}, s{sEX}")
    selt_idx(a, SELT, vIDX, c_, g_, 40)
    a(f"v_bfe_u32 v40, v{c_}, 1, 1\nv_mul_u32_u24 v40, 0xaaaa, v40\nv_add_u32 v40, 0x4444, v40\nv_lshl_or_b32 v{vIDX}, v40, 16, v{vIDX}")
    for i, m in enumerate((0x01010101, 0x02020202, 0x10101010, 0x20202020, 0xff00ff00)): a(f"s_mov_b32 s{sSEL+2*i}, {m}\ns_mov_b32 s{sSEL+2*i+1}, {m}")
    a(f"s_cmp_lt_u32 s{sH}, 16\ns_cselect_b32 s{sPUB2}, s{sPUBM}, 0\ns_cselect_b32 s{sPUB2+1}, 0, s{sPUBM}\ns_cselect_b32 s{sODD}, 1024, 0\ns_add_u32 s{sODD}, s{sODD}, {7168 - 2048*cfg.get('wo', 1)}")
    a(f"v_lshrrev_b32 v40, 2, v{c_}\nv_and_b32 v41, 1, v{c_}\nv_lshl_add_u32 v40, v40, 1, v41\nv_lshl_add_u32 v40, v{g_}, 3, v40\nv_lshlrev_b32 v40, 4, v40\nv_add_u32 v{vOWR}, {LBASE+L_O}, v40")
    a(f"v_mov_b32 v{vPST}, v{P_}\nv_mov_b32 v{vPUB}, v{U_}")
    a(f"s_mov_b32 s{sG8}, {MEM-LBASE+8192}\ns_mov_b32 s{sPF}, {cfg.get('kvs', 0x80000)-7*LBASE-4096}")
    a(f"v_mov_b32 v{vLB}, v18\ns_add_u32 m0, s{sG}, {2*LBASE-MEM}")
    a(f"s_lshl_b32 s{sKV}, s{sH}, 14\ns_lshl_b32 s{T0}, s{sW}, 12\ns_add_u32 s{sKV}, s{sKV}, s{T0}\ns_add_u32 s{sKV}, s{sKV}, {KV-LBASE}")
    a(f"s_mov_b32 s{sC}, {F32(128**-0.5 * 1.4426950408889634)}\ns_mov_b32 s{sC+1}, s{sC}\ns_mov_b32 s{sLIM}, {F32(2.0**cfg.get('lim', 60))}")
    a(f"s_mov_b32 s{sSTEP}, 0\ns_mov_b32 s{sTAG}, 0\ns_mov_b32 s{sMASK}, 0")
    if cfg.get("stamps"):
        for i in (92, 93, 94, 95, 100, 101): a(f"s_mov_b32 s{i}, 0")
    wait_dbg(a, D_INIT, 1, 40)
    rt(a, 3)
    a(f"s_lshl_b32 s{sFA}, s{sH}, 7\nC_W01:")
    spin(a)
    a(f"buffer_load_dwordx2 v[40:41], off, {s(WS,4)}, s{sFA} sc1\ns_waitcnt vmcnt(0)\nv_min_u32 v40, v40, v41\nv_cmp_eq_u32 vcc, 0, v40\ns_cbranch_vccnz C_W01")
    rt(a, 4)
    wait_dbg(a, D_CB, 32, 40, mask=0xff, keep=T1)
    rt(a, 5)
    a("s_waitcnt lgkmcnt(0)")
    a(f"s_lshl_b32 s{T3}, s{T3}, 5\ns_cmp_lg_u32 s{T1}, s{T3}\ns_cselect_b32 s{T1}, 4, {4 if cfg.get('force_slow') else 0}\ns_add_u32 s{T0}, s{sW}, s{T1}")
    for i in range(8): a(f"s_cmp_eq_u32 s{T0}, {i}\ns_cbranch_scc1 C_ENTRY{i}")
    a("s_branch END")
    for mode in range(2):
        for w in range(4): step(a, cfg, w, "sc1" if mode else "", 4*mode + w)

def step(a, cfg, w, st, vid):
    own = ([8], [], [4, 5], [6, 7])[w]
    stamps = cfg.get("stamps"); nochk = cfg.get("nochk"); wo = cfg.get("wo", 1)
    sp = cfg.get("sp", "A q41 S X o0 T P D").split()
    P = lambda k, d: (lambda x: x[w] if isinstance(x, tuple) else x)(cfg.get(k, d))
    def stamp(i):
        if stamps and i in sp: a(f"s_mem{'real' if cfg.get('trace') == 1 else ''}time {s(76+2*sp.index(i),2)}")
    def count(i):
        if stamps: a(f"s_add_u32 s{i}, s{i}, 1")
    ds, vm = Q(a, "lgkmcnt"), Q(a, "vmcnt")
    slot = lambda i: (56, 60, 12, 56, 60, 64, 68, 72, 76)[i]
    pL = P("pL", -1)
    OG = 56 - 4*len(own)
    def gown():
        for j in range(len(own)): vm.add("h", f"buffer_load_dwordx4 {v(OG+4*j,4)}, v{vLB}, {s(WS,4)}, s{sEX} offen offset:{1024*j} sc1")
    def wown(j): ds.add("w", f"ds_write_b128 v{vLB}, {v(OG+4*j,4)} offset:{1024*own[j]}")
    def dma():
        for j in range(2*(w == 1)): vm.add("g", f"buffer_load_dwordx4 v{vLB}, {s(WS,4)}, s{sG} offen offset:{1024*j} sc1 lds")
    RD = (72, 64, 48)
    def rload(u):
        for j in range(2): vm.add(f"r{u}{j}", f"buffer_load_dwordx4 {v(RD[u]+4*j,4)}, v{vLB}, {s(WS,4)}, s{sR1+(u if w else 0)} offen offset:{1024*j} sc1")
    def frag(tag, dst, stage, j):
        for x in range(2): ds.add(tag, f"ds_read_b128 {v(dst+4*x,4)}, v{vWOB} offset:{LDSST.index(stage)*4096 + 2048*j + 1024*x}")
    def rd(i): ds.add(f"b{i}", f"ds_read_b128 {v(slot(i),4)}, v{vLB} offset:{1024*i}")
    pKV = P("pKV", ([-2, -2, 3, 17], [-2, -2, 2, 6], [-2, -2, 17, 18], [-2, -2, 17, 18]))
    def kvl(x): vm.add("kv"[x//2], f"buffer_load_dwordx4 {v(KX+4*x,4)}, v{vLB}, {s(WS,4)}, s{sKV} offen offset:{1024*x}")
    def kvat(n):
        for x in range(4):
            if pKV[x] == n: kvl(x)
    a.flush()
    a(f"C_RA{vid}:")
    spin(a); count(93)
    a("s_waitcnt vmcnt(0) lgkmcnt(0)\ns_barrier")
    dma()
    a(f"C_ENTRY{vid}:\ns_nop 7")
    for i in range(16, 40): a(f"v_mov_b32 v{i}, 0")
    for j in range(2): frag(f"v0{j}", 64+8*j, (2, 0), j)
    vm.drain(); kvat(-2)
    a(f"C_A{vid}:")
    vm.q = ["g"]*(w < 2) + vm.q
    if w == 0: ds.drain()
    a("s_barrier")
    stamp("A")
    for i in range(2): rd(i)
    if pL == -1: gown()
    kvat(-1)
    QK = lambda i: [(0, i, 0), (1, i, 0), (0, i, 1), (1, i, 1)]
    VV = lambda i: [(2, i, 0), (2, i, 1)]
    seq = QK(0) + VV(0) + QK(1) + VV(1) + QK(2) + VV(2) + QK(3) + QK(4) + QK(5)
    seq += [(x, i, 0) for i in (6, 7, 8) for x in (0, 1)] + [(0, i, 1) for i in (6, 7, 8)] + [(1, i, 1) for i in (6, 7, 8)]
    pB, pW, pC = P("pB", 6), P("pW", 13), P("pC", 18)
    pK = pC + 3; assert pC >= 16
    mem = {n: [] for n in range(42)}; val = {n: [] for n in range(42)}
    if pL >= 0: mem[pL].append(gown)
    mem[pB].append(lambda: (vm.wait("g"), a("s_barrier"), rd(2)))
    mem[pB+1].append(lambda: rd(3))
    def spread(L, n):
        val[n] += L[:-1]; val[n+1].append(L[-1])
    tg = lambda bs: [b + x for b in bs for x in (range(4) if st else (0,))]
    c1 = pB + 6
    mem[c1].append(lambda: ds.wait("b3"))
    spread(chkl(tg([slot(2), slot(3)]), vT), c1)
    mem[c1+2].insert(0, lambda: a(f"s_cbranch_vccnz C_RA{vid}"))
    if own:
        for j in range(len(own)): mem[pW + j*P("pw2", 2)].append(lambda j=j: (vm.wait("h"), wown(j)))
        c2 = max(pW + 1, c1 + 2); assert c2 + 2 <= pC and min(pKV[4-len(own):]) >= c2 + 2
        spread(chkl(tg([OG, 52]), vT), c2)
        mem[c2+2].insert(0, lambda: a(f"s_cbranch_vccnz C_OF{vid}\nC_OK{vid}:"))
    for n in range(30): mem[n].append(lambda n=n: kvat(n))
    mem[pC].append(lambda: (ds.wait("w"), a("s_barrier"), rd(4)))
    for k in range(2): mem[pC+1+k].append(lambda k=k: (rd(5+2*k), rd(6+2*k)))
    for j in range(2):
        mem[4+j].append(lambda j=j: frag(f"v1{j}", 64+8*j, (2, 1), j))
        mem[10+j].append(lambda j=j: frag(f"v2{j}", 64+8*j, (2, 2), j))
    pP = P("pP", pC+1)
    n0 = max(pK + 2, pP + 1)
    mem[n0].append(lambda: a(f"s_add_u32 s{sKV}, s{sKV}, {cfg.get('kvs', 0x80000)}\ns_mov_b32 s{sEX}, s{sG if w else sG8}"))
    mem[35].append(lambda: a(f"s_xor_b32 s{sTAG}, s{sTAG}, -1\ns_mov_b32 s{sMASK}, {0 if nochk else 1}"))
    pfm = cfg.get("pfm", 1)
    def pf():
        if pfm == 1: vm.add("p", f"buffer_load_dword v{vPF}, v{vPF}, {s(WS,4)}, s{sKV} offen")
    if w % 2: val[pP-2].append(f"v_lshl_add_u32 v{vPF}, v{vLB}, 3, s{sPF}"); mem[pP].append(pf)
    if w == 1:
        mem[n0+2].append(lambda: a(f"s_add_u32 s{T0}, s{sSTEP}, 2\ns_min_u32 s{T0}, s{T0}, 63"))
        mem[n0+3].append(lambda: a(f"s_lshr_b32 s{sNEED}, s{T0}, 2\ns_and_b32 s{T0}, s{T0}, 3"))
        mem[n0+4].append(lambda: a(f"s_lshl_b32 s{sFA}, s{sH}, 5\ns_add_u32 s{sFA}, s{sFA}, s{T0}"))
        mem[n0+5].append(lambda: (a(f"s_lshl_b32 s{sFA}, s{sFA}, 2"), vm.add("f", f"buffer_load_dword v{vT}, off, {s(WS,4)}, s{sFA} {cfg.get('fsc', 'sc1')}")))
    if w == 3:
        val[pK].append(f"v_add_u32 v12, s{sMB}, v{vLB}"); val[pK+1].append(f"v_mov_b32 v{vT}, s{sSTEP}")
        mem[pK+2].append(lambda: ds.add("m", "ds_read_b128 v[12:15], v12"))
        mem[n0+1].append(lambda: vm.add("x", f"buffer_store_dword v{vT}, off, {s(SMX,4)}, s{sMF} sc1"))
        mem[n0+6].append(lambda: (ds.wait("m"), vm.add("x", f"buffer_store_dwordx4 v[12:15], v{vLB}, {s(SMX,4)}, s{sMX} offen sc1")))
        mem[n0+7].append(lambda: a(f"s_add_u32 s{sMX}, s{sMX}, 16384"))
    CV = lambda d, x: f"v_cvt_pk_bf16_f32 v{d}, v{x}, v{x+1}"
    for k, (d, x) in enumerate(((16, 16), (17, 18), (18, 20), (19, 22), (24, 24), (25, 26))): val[36+k].append(CV(d, x))
    for n, (M, i, j) in enumerate(seq):
        ds.wait(f"b{i}")
        if M == 2: ds.wait(f"v{i}{j}")
        smf(a, ACC + (8*j + 4*M if M < 2 else 16 + 4*j), slot(i), 64+8*j if M == 2 else wreg(M, i, j))
        stamp(f"q{n}")
        for f in mem[n]: f()
        for x in val[n]: a(x)
    vq = [(i, j) for i in (7, 8, 5, 6, 3, 4) for j in range(2)]
    ONE, HALF, SUM = 12, 20, 36
    sh = [f"v_mul_f32 v{24+i}, s{sC}, v{20+i}" for i in range(4)] + [f"v_mov_b32 v{ONE+i}, 0x3f803f80" for i in range(4)] + [f"v_mov_b32 v{HALF+i}, 0x3f003f00" for i in range(2)]
    def V(f=None, fill=True):
        i, j = vq.pop(0); smf(a, 32+4*j, slot(i), wreg(2, i, j))
        if f: f()
        if fill and sh: a(sh.pop(0))
    mf32(a, 20, 16, SELT)
    a(CV(26, 28)); a(CV(27, 30))
    mf32(a, 28, 24, SELT); stamp("t1")
    a(CV(16, 20)); a(CV(17, 22))
    V(fill=False)
    vm.wait("k")
    a(f"s_mov_b64 vcc, {s(sQM,2)}")
    a(CV(18, 28)); a(CV(19, 30))
    mf32(a, 24, KX+4, 16); mf32(a, 20, KX, 16); mf32(a, 28, 16, 16); stamp("t2")
    for i in range(4): a(f"v_cndmask_b32_dpp v{20+i}, v{24+i}, v{20+i}, vcc quad_perm:[2,3,2,3] {DP}")
    V(lambda: ds.add("w", f"ds_write_b128 v{vLB}, v[20:23] offset:{L_S+1024*w}"), False)
    a(f"v_cndmask_b32_dpp v28, v29, v28, vcc quad_perm:[2,3,2,3] {DP}")
    V(lambda: ds.add("w", f"ds_write_b32 v{vLB}, v28 offset:{L_SM+4*w}"))
    stamp("t3"); nv = cfg.get("nv", 4)
    for i in range(nv): V(fill=i < nv-1)
    stamp("t4")
    if cfg.get("clk") and w == 1:
        a(f"C_CK{vid}:\ns_memrealtime s[98:99]\ns_waitcnt lgkmcnt(0)\ns_lshr_b32 s98, s98, {cfg['clk']}\ns_cmp_eq_u32 s98, s101\ns_cbranch_scc1 C_CK{vid}\ns_mov_b32 s101, s98")
    ds.drain(); a("s_barrier")
    stamp("S")
    STG = [72, 64, 56, 48]
    L = [(j, 0) for j in range(4)] + [(j, x) for j in range(4) for x in (1, 2, 3) if 2*j + x//2 not in OREG]
    def wrd(k): frag(f"o{k}", STG[k % 4], (3, 2*L[k][0] + L[k][1]//2), L[k][1] % 2)
    srd_ = lambda t, d, x: ds.add(t, f"ds_read_b128 {v(d,4)}, v{vLB} offset:{x}")
    srd_("sm", 28, L_SM); srd_("s1", 16, L_S+1024*(w ^ 1))
    V(lambda: (srd_("s2", 40, L_S+1024*(w ^ 2)), srd_("s3", 44, L_S+1024*(w ^ 3))))
    while len(vq) > 3: V()
    V(lambda: wrd(0)); V(lambda: wrd(1)); V()
    for x in sh: a(x)
    PK = lambda x, y: f"v_pk_fma_f32 {v(24+y,2)}, {v(x+y,2)}, {s(sC,2)}, {v(24+y,2)}"
    SMS = f"v_pk_add_f32 v[28:29], v[28:29], v[30:31]\nv_add_f32 v28, v28, v29\nv_mul_f32 v28, s{sC}, v28"
    ds.wait("sm"); stamp("s1")
    a(SMS)
    ds.wait("s1"); a(PK(16, 0)); a("v_exp_f32 v29, v28"); a(PK(16, 2))
    ds.wait("s2"); a(PK(40, 0)); cvt(a, 30, 29, 29); a(PK(40, 2))
    ds.wait("s3"); stamp("s2"); a(PK(44, 0)); a(f"v_mov_b32_dpp v31, v30 quad_perm:[2,3,0,1] {DP}"); a(PK(44, 2))
    a(CV(32, 32)); a(CV(33, 34)); a(CV(34, 36)); a(CV(35, 38))
    def pv(main):
        a("v_exp_f32 v24, v24")
        mf16(a, 40, 32, 30)
        if main: stamp("s3"); wrd(2)
        a("v_exp_f32 v25, v25")
        mf16(a, 44, 34, 30)
        if main: vm.wait("v")
        a("v_exp_f32 v26, v26")
        mf16(a, SUM, HALF, 30)
        a("v_exp_f32 v27, v27")
        a(CV(16, 24)); a(CV(17, 26))
        a("v_mov_b64 v[22:23], 0")
        a(f"v_mov_b32_dpp v18, v16 quad_perm:[2,3,0,1] {DP}\nv_mov_b32_dpp v19, v17 quad_perm:[2,3,0,1] {DP}")
        a("v_mov_b64 v[24:25], 0\nv_mov_b64 v[26:27], 0")
        mf32(a, SUM, ONE, 16, SUM)
        a("v_mov_b32 v20, 0\nv_mov_b32 v21, 0")
        mf32(a, 40, VX, 16, 40)
        a("v_mov_b32 v28, 0\nv_mov_b32 v29, 0")
        mf32(a, 44, VX+4, 16, 44)
        if main: stamp("s4")
        a(f"v_rcp_f32 v{SUM+2}, v{SUM}")
        for b in (40, 44):
            for x in (b, b+2): a(f"v_pk_mul_f32 {v(x,2)}, {v(x,2)}, {v(SUM+2,2)} op_sel_hi:[1,0]")
            if b == 44: a(f"s_mov_b64 exec, {s(sQM,2)}")
            for x in (b, b+2): a(CV(20+x//2, x))
        ds.add("w", f"ds_write_b128 v{vOWR}, v[40:43] offset:{512*w}")
        a("s_mov_b64 exec, -1")
    pv(True); stamp("s6")
    a(f"v_max_f32 v{SUM}, v{SUM}, v{SUM+2}\nv_cmp_nge_f32 vcc, s{sLIM}, v{SUM}")
    dup = lambda: [a(f"v_mov_b32_dpp v{i}, v{i} quad_perm:[2,3,2,3] {DP}") for i in range(40, 44)]
    dup()
    if not nochk: a(f"s_cbranch_vccnz C_FB{vid}")
    a(f"C_FBOK{vid}:")
    AC = [20, 24, 28, 32, 16]; AF = [40, 44, 36, 12]
    def osm(j, x):
        tags = [f"a{x}"]; ix = f"v{vIDX} abid:1"
        if j == 4: B = wreg(2, OREG[8], x//2); ix = "v21" if x % 2 else ix
        elif (j, x) in L: k = L.index((j, x)); tags.append(f"o{k}"); B = STG[k % 4]
        else: B = wreg(2, OREG[2*j + x//2], x % 2)
        ds.wait(*tags); smf(a, AC[j], AF[x], B, ix)
    Z = lambda x: f"v_mov_b64 {v(x,2)}, 0"
    a(Z(30))
    osm(0, 0); wrd(3); a(Z(16))
    osm(1, 0); wrd(4); a(Z(18))
    n1 = cfg.get("own", 2)
    if n1 == 3: osm(2, 0)
    ds.wait("w"); a("s_barrier")
    stamp("X")
    for x in (1, 2, 3): ds.add(f"a{x}", f"ds_read_b128 {v(AF[x],4)}, v{vOWR} offset:{512*(w ^ x)}")
    if n1 == 2: osm(2, 0)
    wrd(5); a(Z(32))
    osm(4, 0); wrd(6); a(Z(34))
    osm(3, 0); wrd(7)
    pR = P("pR", ([12, 21, 40], [52, 85], [67], [80]))
    assert all(x >= y for x, y in zip(pR, (6, 9, 11)))
    def pst(j, x): vm.add("x", f"buffer_store_dword v{AC[j]+2*x}, v{vPST}, {s(WS,4)}, s{sTILE+2*j+x} offen {st}")
    FIN = lambda y: f"{CV(y, y)}\nv_bfi_b32 v{y}, 1, s{sTAG}, v{y}"
    for n in range(15):
        j, x = n//3, n % 3 + 1
        osm(j, x); stamp(f"o{n}")
        if n == 5: pst(0, 0); pst(0, 1)
        if n >= 8 and n % 3 != 1: pst((n-5)//3, (n-5) % 3)
        if n in pR: rload(pR.index(n))
        if (j, x) in L and 8 <= L.index((j, x)) + 4 < len(L): wrd(L.index((j, x)) + 4)
        if n == 4: a(FIN(AC[0])); a(FIN(AC[0]+2))
        if n == 6: a("v_mov_b32 v21, 0xeeee")
        if n >= 7 and n % 3 != 0: a(FIN(AC[(n-4)//3] + 2*((n-4) % 3)))
    pst(3, 1)
    sel = ["v_mov_b32 v60, 0x3f80", f"v_cndmask_b32 v60, v60, 1.0, {s(sSEL+8,2)}"] + [f"v_cndmask_b32 v{SELR+p}, 0, v60, {s(sSEL+2*p,2)}" for p in range(4)]
    a(FIN(AC[4])); pst(4, 0)
    stamp("T")
    zl = sel + [f"v_mov_b32 v{i}, 0" for i in list(range(20, 40)) + [17, 18, 19, 16]]
    def zero(n):
        for _ in range(n): a(zl.pop(0) if zl else "v_mov_b32 v39, 0")
    d3, dg = P("d3", 16), P("dg", 8)
    n = 15
    for u, x in enumerate(pR):
        if x >= 15: zero(x - n); rload(u); n = x
    zero(len(zl) if w else max(0, 21 - n))
    def acc():
        if not stamps: return
        if sp: ds.drain()
        if cfg.get("trace"):
            for i in range(8): a(f"v_mov_b32 v{40+i}, s{76+2*i if i < 6 else (92, 94 if w == 0 else 93)[i-6]}")
            a(f"s_lshl_b32 s{T0}, s{sH}, 8\ns_add_u32 s{T0}, s{T0}, s{sSTEP}\ns_lshl_b32 s{T0}, s{T0}, 5\ns_add_u32 s{T0}, s{T0}, {YT + 2048*w}\ns_mov_b64 exec, 1")
            for i in range(2): vm.add("x", f"buffer_store_dwordx4 {v(40+4*i,4)}, off, {s(WS,4)}, s{T0} offset:{16*i}")
            a("s_mov_b64 exec, -1")
        for i in range(len(sp)): a(f"s_add_u32 s{16+i}, s{16+i}, s{76+2*i}")
        a(f"s_cmp_eq_u32 s{sSTEP}, 1\ns_cbranch_scc0 C_NS{vid}\ns_memtime s[96:97]\ns_mov_b64 s[16:17], 0\ns_mov_b64 s[18:19], 0\ns_mov_b64 s[20:21], 0\ns_mov_b64 s[22:23], 0\nC_NS{vid}:")
    acc()
    RA = 60
    def ror(q):
        for i in range(2): a(f"v_add_f32_dpp v{RA+i}, v{RA+i}, v{RA+i} row_ror:{q} {DP}")
    def publish(u):
        ror(8)
        a(f"s_mov_b64 exec, {s((sPUBM, sPUB2)[u],2)}")
        a(FIN(RA))
        vm.add("x", f"buffer_store_dword v{RA}, v{vPUB}, {s(WS,4)}, {('0', f's{sODD}')[u]} offen {st}")
        a("s_mov_b64 exec, -1")
    rchk = lambda u: chk(a, [RD[u]+i for i in range(8)], 12)
    def reduce(u):
        vm.wait(f"r{u}0"); mf32(a, RA, SELR, RD[u])
        vm.wait(f"r{u}1"); mf32(a, RA, SELR, RD[u]+4, RA)
        rchk(u); ror(4)
        if not nochk: a(f"s_cbranch_vccnz C_RR{u}{vid}")
        a(f"C_RT{u}{vid}:")
        publish(u)
    reduce(0)
    stamp("P")
    if w == wo: reduce(1); stamp("E")
    a(f"s_add_u32 s{sSTEP}, s{sSTEP}, 1\ns_cmp_eq_u32 s{sSTEP}, {NSTEP}\ns_cbranch_scc1 C_X{vid}")
    def v0(n):
        a(f"s_waitcnt vmcnt({n})")
        for j in range(2): frag(f"v0{j}", 64+8*j, (2, 0), j)
    if w == 1: a(f"C_FW{vid}:\nv_cmp_ge_u32 vcc, s{sNEED}, v{vT}\ns_cbranch_vccnz C_RF{vid}")
    if w == 0:
        RING = (56, 40, 48)
        def gl(k):
            for j in range(2): a(f"buffer_load_dwordx4 {v(RING[k]+4*j,4)}, v{vLB}, {s(WS,4)}, s{sG} offen offset:{1024*j} sc1")
        zero(d3); gl(0); stamp("D"); zero(dg); gl(1); zero(dg); gl(2); zero(len(zl)); v0(7)
        for k in range(3):
            b = RING[k]
            a(f"C_G{k}{vid}:\ns_waitcnt vmcnt(4)")
            if st: chk(a, list(range(b, b+8)), 12)
            else: a("\n".join(chkl([b, b+4], 12)))
            a(f"ds_write_b128 v{vLB}, {v(b,4)}\ns_cbranch_vccnz C_H{k}{vid}\ns_barrier\nds_write_b128 v{vLB}, {v(b+4,4)} offset:1024")
            stamp("G"); kvat(-2)
            a(f"s_branch C_A{vid}\nC_H{k}{vid}:")
            gl(k); count(94)
        spin(a); a(f"s_branch C_G0{vid}")
    else:
        v0(1); a("s_barrier")
        dma(); stamp("D")
        kvat(-2)
        a(f"s_branch C_A{vid}")
    a(f"C_X{vid}:")
    a("s_waitcnt vmcnt(0) lgkmcnt(0)")
    if stamps:
        a("s_memtime s[98:99]\ns_waitcnt lgkmcnt(0)\ns_sub_u32 s98, s98, s96")
        a(f"s_lshl_b32 s{T0}, s{sH}, 2\ns_add_u32 s{T0}, s{T0}, {w}\ns_lshl_b32 s{T0}, s{T0}, 6\ns_add_u32 s{T0}, s{T0}, 0x20000")
        for i, x in enumerate(list(range(16, 24)) + [92, 93, 94, 95, 100, 101, 98]): a(f"v_mov_b32 v{16+i}, s{x}")
        for i in range(4): a(f"buffer_store_dwordx4 {v(16+4*i,4)}, off, {s(WS,4)}, s{T0} offset:{16*i}")
    if w == 3:
        a(f"s_cmp_lt_u32 s{sH}, 9\ns_cbranch_scc0 END")
        a(f"v_mov_b32 v{vT}, s{sSTEP}\ns_add_u32 s{T1}, s{sMB}, {MEM-LBASE}\nbuffer_store_dword v{vT}, off, {s(WS,4)}, s{sMF} sc1")
        a(f"C_FL{vid}:")
        spin(a)
        a(f"buffer_load_dwordx4 v[64:67], v{vLB}, {s(WS,4)}, s{T1} offen sc1\ns_waitcnt vmcnt(0)")
        chk(a, list(range(64, 68)), 40)
        if not nochk: a(f"s_cbranch_vccnz C_FL{vid}")
        a(f"buffer_store_dwordx4 v[64:67], v{vLB}, {s(WS,4)}, s{sMX} offen sc1")
        a(f"v_mov_b32 v36, {NSTEP+1}\ns_waitcnt vmcnt(0)\nbuffer_store_dword v36, off, {s(WS,4)}, s{sMF} sc1")
    a("s_branch END")
    if w == 0:
        a(f"C_RR0{vid}:")
        for k in (1, 2, 0):
            rload((k+2) % 3); count(92)
            if k == 0: spin(a)
            a("s_waitcnt vmcnt(5)"); mf32(a, RA, SELR, RD[k])
            a("s_waitcnt vmcnt(4)"); mf32(a, RA, SELR, RD[k]+4, RA)
            rchk(k); ror(4)
            a(f"s_cbranch_vccz C_RT0{vid}")
        a(f"s_branch C_RR0{vid}")
    for u in range(2 if w == wo else 1 if w else 0):
        both = w == wo and u == 0
        def again():
            a("s_mov_b64 exec, vcc"); rload(u); a("s_mov_b64 exec, -1")
            if both: rload(1)
        a(f"C_RR{u}{vid}:")
        again()
        for _ in range(cfg.get("dr", 20)): a("v_mov_b32 v12, 0")
        a(f"C_RL{u}{vid}:")
        again()
        spin(a); count((92, 100)[u])
        a(f"s_waitcnt vmcnt({6 if both else 2})")
        rchk(u)
        a(f"s_cbranch_vccnz C_RL{u}{vid}\nC_RM{u}{vid}:")
        mf32(a, RA, SELR, RD[u]); mf32(a, RA, SELR, RD[u]+4, RA)
        if both: rchk(1)
        ror(4)
        if both:
            publish(0); stamp("P")
            a(f"s_cbranch_vccz C_RM1{vid}\ns_branch C_RL1{vid}")
        else: a(f"s_branch C_RT{u}{vid}")
    if own:
        a(f"C_OF{vid}:")
        gown()
        for _ in range(cfg.get("dr", 20)): a(f"v_mov_b32 v{vT}, 0")
        a(f"C_OL{vid}:")
        gown(); spin(a); count(101)
        a(f"s_waitcnt vmcnt({len(own)})")
        a("\n".join(chkl(list(range(OG, 56)), vT)))
        a(f"s_cbranch_vccnz C_OL{vid}")
        for j in range(len(own)): wown(j)
        ds.drain()
        a(f"s_branch C_OK{vid}")
    if w == 1:
        a(f"C_RF{vid}:")
        spin(a); count(95)
        a(f"buffer_load_dword v{vT}, off, {s(WS,4)}, s{sFA} sc1\ns_waitcnt vmcnt(0)\ns_branch C_FW{vid}")
    a.flush()
    a(f"C_FB{vid}:")
    srd_("s", 28, L_SM)
    for x, d in enumerate((24, 16, 40, 44)): srd_("s", d, L_S+1024*(w ^ x))
    for i in range(2): a(f"v_mov_b32 v{HALF+i}, 0x3f003f00")
    ds.drain()
    a(SMS)
    for i in range(4): a(f"v_mul_f32 v{24+i}, s{sC}, v{24+i}")
    for x in (16, 40, 44): a(PK(x, 0)); a(PK(x, 2))
    a("v_max3_f32 v36, v24, v25, v26\nv_max3_f32 v36, v36, v27, v28")
    a(f"v_max_f32_dpp v36, v36, v36 quad_perm:[2,3,0,1] {DP}\nv_mov_b32 v37, v36")
    a("v_permlane16_swap_b32 v36, v37\nv_max_f32 v36, v36, v37\nv_mov_b32 v37, v36\nv_permlane32_swap_b32 v36, v37\nv_max_f32 v36, v36, v37")
    for i in range(5): a(f"v_sub_f32 v{24+i}, v{24+i}, v36")
    a("v_exp_f32 v29, v28"); cvt(a, 30, 29, 29); a(f"v_mov_b32_dpp v31, v30 quad_perm:[2,3,0,1] {DP}")
    pv(False); dup()
    ds.drain()
    a.flush()
    a(f"s_branch C_FBOK{vid}")
```

```python
from asm import *
KVF, OF, MF = 0, 4096, 4608
FLAGBYTES = 8192
CF = 0x10000
MEM, PART, MEMX, YT, KV, OX = 0x40000, 0x80000, 0x100000, 0x200000, 0x1000000, 0x3000000
WSBYTES = 0x4000000
D_CT, D_CB, D_T, D_INIT, D_S = 0, 4, 128, 192, 196
WS, DBG = 8, 12
SWQ, SWK, SWV, SWO, SX, SG = 16, 20, 24, 28, 32, 36
sROLE, sH, sW, sSTEP, sTAG, sBUD, sXCC = 40, 41, 42, 43, 44, 45, 46
T0, T1, T2, T3 = 2, 3, 14, 15
BUDGET = 400000
def srd(a, d, slot, nbytes):
    a(f"s_load_dwordx2 {s(d,2)}, s[0:1], {slot*8}")
    a(f"s_mov_b32 s{d+2}, {nbytes}\ns_mov_b32 s{d+3}, 0x00020000")
def spin(a):
    a(f"s_sub_u32 s{sBUD}, s{sBUD}, 1\ns_cbranch_scc1 END")
CFG = {}
def rt(a, i):
    if CFG.get("rt"): a(f"s_memrealtime {s(88+2*i,2)}\ns_waitcnt lgkmcnt(0)")
def rtdump(a):
    if not CFG.get("rt"): return
    rt(a, 6)
    a(f"s_mov_b64 exec, 1\ns_lshl_b32 s{T0}, s{sROLE}, 2\ns_add_u32 s{T0}, s{T0}, s{sW}\ns_lshl_b32 s{T0}, s{T0}, 5\ns_add_u32 s{T0}, s{T0}, 0x24000\ns_nop 15")
    for i in range(7): a(f"v_mov_b32 v{8+i}, s{88+2*i}")
    a(f"v_mov_b32 v15, s{sBUD}\nbuffer_store_dwordx4 v[8:11], off, {s(WS,4)}, s{T0}\nbuffer_store_dwordx4 v[12:15], off, {s(WS,4)}, s{T0} offset:16")
def dcol(kb, ga):
    return 128*(kb//2) + 32*ga + 16*(kb % 2) if kb < 8 else 512 + 16*ga
def wreg(M, kb, j): return 80 + 8*(M*18 + kb*2 + j)

def prologue(a):
    rt(a, 0)
    srd(a, WS, 17, WSBYTES)
    a(f"s_load_dwordx2 {s(DBG,2)}, s[0:1], 128")
    srd(a, SWQ, 2, 4718592); srd(a, SWK, 3, 4718592); srd(a, SWV, 4, 4718592); srd(a, SWO, 5, 4718592)
    srd(a, SX, 0, 2359296)
    a(f"s_and_b32 s{sROLE}, s2, 7\ns_lshl_b32 s{sROLE}, s{sROLE}, 5\ns_lshr_b32 s{T1}, s2, 3\ns_add_u32 s{sROLE}, s{sROLE}, s{T1}")
    a(f"v_lshrrev_b32 v1, 6, v0\nv_readfirstlane_b32 s{sW}, v1\nv_and_b32 v0, 63, v0\ns_mov_b32 s{sBUD}, {BUDGET}")
    a(f"s_waitcnt lgkmcnt(0)\ns_cmp_ge_u32 s2, 256\ns_cbranch_scc1 EXIT")
    rt(a, 1)

def wait_dbg(a, off, val, vt, mask=None, keep=None):
    L = a.newlabel("WD")
    a(f"v_mov_b32 v{vt}, {off}")
    a(f"{L}:")
    spin(a)
    a(f"global_load_dword v{vt+1}, v{vt}, {s(DBG,2)} sc1\ns_waitcnt vmcnt(0)\nv_readfirstlane_b32 s{T0}, v{vt+1}")
    if keep is not None: a(f"s_mov_b32 s{keep}, s{T0}")
    if mask: a(f"s_and_b32 s{T0}, s{T0}, {mask}")
    a(f"s_cmp_lt_u32 s{T0}, {val}\ns_cbranch_scc1 {L}")

def load_weights(a, ldsst, regst, extra=None):
    vW, vO, vO8, vTR, vWB = 44, 46, 48, 50, 54
    sLB, sW32, sW16 = 47, 48, 49
    a(f"s_mul_i32 s{sLB}, s{sW}, 36864\ns_lshl_b32 s{sW32}, s{sW}, 18\ns_lshl_b32 s{sW16}, s{sW}, 17\ns_lshl_b32 s{T0}, s{sH}, 8")
    a(f"v_lshrrev_b32 v1, 4, v0\nv_and_b32 v2, 15, v0\nv_lshlrev_b32 v3, 2, v1\nv_xor_b32 v2, v2, v3")
    a(f"v_lshl_add_u32 v3, v1, 13, s{T0}\nv_lshl_add_u32 v{vW}, v2, 4, v3\nv_xor_b32 v{vW+1}, 32, v{vW}")
    if ldsst:
        a(f"s_lshr_b32 s{T1}, s{sW}, 1\ns_lshl_b32 s{T1}, s{T1}, 3\ns_and_b32 s{T2}, s{sW}, 1\ns_add_u32 s{T1}, s{T1}, s{T2}\ns_mul_i32 s{T1}, s{T1}, {4*1152}")
        a(f"s_mul_i32 s{T0}, s{sH}, 147456\ns_add_u32 s{T0}, s{T0}, s{T1}")
        a(f"v_lshrrev_b32 v3, 1, v1\nv_and_b32 v4, 1, v1\nv_lshl_add_u32 v3, v3, 4, v4\nv_lshrrev_b32 v4, 3, v2\nv_lshl_add_u32 v3, v4, 6, v3\nv_xor_b32 v5, 64, v3")
        a(f"v_lshl_add_u32 v6, v2, 4, s{T0}\nv_mul_u32_u24 v3, 1152, v3\nv_mul_u32_u24 v5, 1152, v5\nv_add_u32 v{vO}, v3, v6\nv_add_u32 v{vO+1}, v5, v6")
        a(f"v_lshlrev_b32 v4, 7, v4\nv_sub_u32 v{vO8}, v{vO}, v4")
    park = [x[1] for x in regst[-8:]] + [64]
    st = [(x, park[k]) for k, x in enumerate(ldsst)] + list(regst)
    N = len(st)
    def issue(n):
        M, kb = st[n][0]
        a(f"s_add_u32 m0, s{sLB}, {(n % 9)*4096}")
        for i in range(4):
            if M < 3: a(f"s_add_u32 s{T0}, s{sW32 if kb < 8 else sW16}, {(dcol(kb, 0) + 4*i)*8192 - 1024*i}"); va = vW + i//2
            else: a(f"s_mov_b32 s{T0}, {(8*(i//2) + 2*(i % 2))*1152 + 256*(kb//2) - 1024*i}"); va = vO + kb % 2 if kb < 8 else vO8
            a(f"buffer_load_dwordx4 v{va}, {s((SWQ, SWK, SWV, SWO)[M],4)}, s{T0} offen offset:{1024*i} lds")
    for n in range(9): issue(n)
    a(f"v_lshrrev_b32 v2, 1, v1\nv_mul_u32_u24 v2, 36864, v2\nv_and_b32 v3, 1, v1\nv_lshl_add_u32 v2, v3, 11, v2\nv_lshl_add_u32 v2, v3, 5, v2")
    a(f"v_bfe_u32 v3, v0, 2, 2\nv_lshl_add_u32 v2, v3, 8, v2\nv_xor_b32 v3, s{sW}, v3\nv_lshl_add_u32 v2, v3, 6, v2\nv_and_b32 v3, 3, v0\nv_lshl_add_u32 v{vTR}, v3, 3, v2")
    a(f"v_add_u32 v{vTR+1}, 73728, v{vTR}\nv_xor_b32 v{vTR+2}, 32, v{vTR}\nv_xor_b32 v{vTR+3}, 32, v{vTR+1}\nv_lshl_add_u32 v{vWB}, v0, 4, s{sLB}")
    if ldsst:
        a(f"v_bfe_u32 v2, v0, 2, 1\nv_and_b32 v3, 1, v1\nv_lshl_add_u32 v2, v3, 1, v2\nv_lshrrev_b32 v3, 1, v1\nv_mul_u32_u24 v3, 36864, v3\nv_lshl_add_u32 v3, v2, 8, v3")
        a(f"v_and_b32 v4, 3, v0\nv_lshl_add_u32 v3, v4, 3, v3\nv_bfe_u32 v4, v0, 3, 1\nv_lshlrev_b32 v2, 6, v2")
        a(f"s_lshl_b32 s{T0}, s{sW}, 6\nv_lshl_add_u32 v5, v4, 5, s{T0}\nv_xor_b32 v5, v5, v2\nv_add_u32 v5, v5, v3\ns_and_b32 s{T0}, s{sW}, 1\ns_mul_i32 s{T1}, s{T0}, 73728\ns_sub_u32 s{T2}, 73728, s{T1}")
        a(f"v_add_u32 v56, s{T1}, v5\nv_add_u32 v57, s{T2}, v5\nv_xor_b32 v4, s{T0}, v4\nv_mul_u32_u24 v4, 73728, v4\nv_add_u32 v3, v3, v4")
        a(f"s_lshr_b32 s{T0}, s{sW}, 1\ns_lshl_b32 s{T0}, s{T0}, 7\ns_lshl_b32 s{T1}, s{sW}, 5\ns_add_u32 s{T0}, s{T0}, s{T1}\nv_xor_b32 v2, s{T0}, v2\nv_add_u32 v58, v2, v3\nv_xor_b32 v59, 128, v58")
    nx = extra() if extra else 0
    def back(k):
        for x in range(4): a(f"ds_write_b128 v{vWB}, {r(park[k] + 4*x, 4)} offset:{k*4096 + 1024*x}")
    for n in range(N):
        a(f"s_waitcnt vmcnt({4*(min(N-1, max(8, n+7)) - n) + (nx if n < 9 else 0)})\ns_barrier")
        if n >= 1 and n + 8 < N: issue(n + 8)
        if ldsst and n >= 28: back(n - 28)
        for j in range(2):
            for q in range(4):
                M, kb = st[n][0]
                va, off = (vTR + 2*j + q//2, q % 2) if M < 3 else (56 + 2*(kb//8) + j, q)
                a(f"ds_read_b64_tr_b16 {r(st[n][1] + 8*j + 2*q, 2)}, v{va} offset:{(n % 9)*4096 + 1024*off}")
        a("s_waitcnt lgkmcnt(0)")
    a("s_barrier")
    if ldsst: back(8)
```

```python
from common import *
from chain import mf32, cvt
import struct
F = lambda x: hex(struct.unpack('<I', struct.pack('<f', x))[0])
sI = 47
GT = YT + 72*32768
UL, RL, TL, PL = 0, 61440, 128000, 141312
def arrive(a, off):
    L = a.newlabel("ARR")
    a(f"s_waitcnt vmcnt(0)\ns_barrier\ns_cmp_lg_u32 s{sW}, 0\ns_cbranch_scc1 {L}")
    a(f"v_mov_b32 v1, {off}\nv_mov_b32 v2, 1\ns_mov_b64 exec, 1\nglobal_atomic_add v1, v2, {s(DBG,2)} sc1\ns_mov_b64 exec, -1")
    a(f"{L}:")
def expbf(a, x, t, sHI, sLO):
    a(f"v_mul_f32 v{t}, s{sHI}, v{x}\nv_rndne_f32 v{t+1}, v{t}\nv_sub_f32 v{t}, v{t}, v{t+1}\nv_fma_f32 v{t}, v{x}, s{sLO}, v{t}")
    a(f"v_exp_f32 v{t}, v{t}\nv_cvt_i32_f32 v{t+1}, v{t+1}\nv_ldexp_f32 v{t}, v{t}, v{t+1}")
    cvt(a, t, t, t); a(f"v_lshlrev_b32 v{x}, 16, v{t}")

def ssm(a, cfg):
    SA, SB, SC_, SD_, SE, SF = 16, 20, 24, 36, 48, 52
    sLO_, sHI_, sD, sCC, sCNT, sLH, sLL = 56, 57, 58, 60, 61, 62, 63
    a("S_ROLE:")
    for d, slot, nb in ((SA, 8, 147456), (SB, 9, 147456), (SC_, 10, 147456), (SD_, 11, 147456), (SE, 12, 1152), (SF, 13, 1152)): srd(a, d, slot, nb)
    XR = 200
    vTID, vUT = 1, 2
    a(f"s_lshl_b32 s{T0}, s{sW}, 6\nv_add_u32 v{vTID}, s{T0}, v0\nv_mul_u32_u24 v3, 9216, v{vTID}\ns_lshl_b32 s{T0}, s{sI}, 4\ns_add_u32 s{T1}, s{T0}, 4608")
    a(f"s_lshl_b32 s{T2}, s{sI}, 2\ns_add_u32 s{T2}, s{T2}, s{sW}\ns_lshl_b32 s{T3}, s{T2}, 2\ns_lshl_b32 s{T2}, s{T2}, 9")
    a(f"v_lshlrev_b32 v4, 3, v0\nv_lshrrev_b32 v5, 5, v0\nv_lshlrev_b32 v6, 1, v5\ns_waitcnt lgkmcnt(0)")
    a(f"buffer_load_ushort v16, v6, {s(SE,4)}, s{T3} offen")
    for i, sr in enumerate((SA, SB, SC_, SD_)): a(f"buffer_load_dwordx2 {v(18+2*i,2)}, v4, {s(sr,4)}, s{T2} offen")
    a(f"buffer_load_ushort v17, v6, {s(SF,4)}, s{T3} offen")
    for j in range(8): a(f"buffer_load_dwordx4 {v(XR+4*j,4)}, v3, {s(SX,4)}, s{T0 if j < 4 else T1} offen offset:{1152*(j % 4)}")
    a(f"s_mov_b32 s{sLO_}, 0x05040100\ns_mov_b32 s{sHI_}, 0x07060302\ns_mov_b32 s{sLH}, 0x3fb8aa00\ns_mov_b32 s{sLL}, {F(1.4426950408889634 - struct.unpack('<f', struct.pack('<I', 0x3fb8aa00))[0])}")
    for i in range(4): a(f"v_mov_b32 v{32+i}, 0")
    a(f"v_lshlrev_b32 v7, 4, v{vTID}\nv_cmp_gt_u32 vcc, 160, v{vTID}\ns_and_saveexec_b64 s[64:65], vcc")
    for ch in range(8): a(f"ds_write_b128 v7, v[32:35] offset:{UL + 7680*ch}")
    a("s_mov_b64 exec, 0xffff")
    vR, vTB, vPR = 8, 9, 10
    a(f"s_mul_i32 s{T0}, s{sW}, 16640\ns_add_u32 s66, s{T0}, {RL}\ns_mul_i32 s{T0}, s{sW}, 3328\ns_add_u32 s67, s{T0}, {TL}\ns_lshl_b32 s{T0}, s{sW}, 12\ns_add_u32 s68, s{T0}, {PL}")
    a(f"v_lshrrev_b32 v7, 2, v0\nv_mul_u32_u24 v7, 4160, v7\nv_and_b32 v11, 3, v0\nv_lshl_add_u32 v7, v11, 4, v7\nv_add_u32 v7, s66, v7\nds_write_b128 v7, v[32:35] offset:4096")
    a(f"v_mul_u32_u24 v7, 208, v0\nv_add_u32 v7, s67, v7\nds_write_b128 v7, v[32:35] offset:192\ns_mov_b64 exec, -1")
    a(f"v_lshrrev_b32 v7, 2, v{vTID}\nv_mul_u32_u24 v7, 80, v7\nv_and_b32 v11, 3, v0\nv_lshl_add_u32 v{vUT}, v11, 4, v7")
    GA = 160
    a(f"v_lshlrev_b32 v7, 5, v0\nv_sub_u32 v7, 2047, v7")
    for e in range(35):
        x = GA + e
        a(f"v_subrev_u32 v11, {e}, v7\nv_cmp_gt_i32 vcc, 0, v11\nv_cvt_f32_i32 v11, v11")
        cvt(a, 11, 11, 11)
        a(f"v_bfe_u32 v12, v11, 7, 8\nv_lshlrev_b32 v11, 16, v11\nv_cvt_u32_f32 v11, v11\nv_subrev_u32 v12, 134, v12\nv_med3_i32 v12, v12, 0, 3")
        a(f"v_lshrrev_b32 v13, 4, v11\nv_bfi_b32 v13, 7, v11, v13\nv_lshrrev_b32 v13, v12, v13\nv_lshl_add_u32 v13, v12, 3, v13")
        a(f"v_bfe_u32 v11, v11, 3, 4\nv_mul_u32_u24 v11, 52, v11\nv_add_u32 v11, v11, v13")
        if e >= 32: a(f"v_cndmask_b32 v11, v11, 48, vcc")
        a(f"v_lshl_add_u32 v{x}, v11, 2, s67")
    c_, g_ = 14, 15
    POS = 40
    a(f"v_and_b32 v{c_}, 15, v0\nv_lshrrev_b32 v{g_}, 4, v0")
    for t in range(3):
        a(f"v_add_u32 v11, {16*t}, v{c_}\nv_lshrrev_b32 v12, 3, v11\nv_subrev_u32 v12, 1, v12\nv_med3_i32 v12, v12, 0, 3\nv_lshlrev_b32 v13, 3, v12\nv_sub_u32 v11, v11, v13\nv_lshlrev_b32 v11, v12, v11")
        a(f"v_lshrrev_b32 v12, 3, v11\nv_and_b32 v11, 7, v11\nv_lshl_add_u32 v11, v12, 7, v11\nv_cvt_f32_u32 v{POS+t}, v11")
    a(f"v_lshlrev_b32 v11, 3, v{c_}\nv_cvt_f32_u32 v{POS+3}, v11")
    a(f"v_mul_u32_u24 v11, 208, v{c_}\nv_lshl_add_u32 v11, v{g_}, 4, v11\nv_add_u32 v{vTB}, s67, v11\nv_lshl_add_u32 v{vPR}, v{g_}, 4, s68")
    a(f"v_lshl_add_u32 v{vR}, v0, 6, s66")
    vA0, vA1, vB, vE = 44, 45, 46, 47
    a(f"v_and_b32 v11, 3, v0\nv_sub_u32 v11, 3, v11\nv_mul_u32_u24 v11, 4160, v11\nv_bfe_u32 v12, v0, 2, 3\nv_lshlrev_b32 v12, 3, v12\nv_sub_u32 v11, v11, v12\nv_lshl_add_u32 v11, v5, 4, v11")
    a(f"s_add_u32 s{T0}, s66, {4088-1984}\nv_add_u32 v{vA0}, s{T0}, v11\nv_subrev_u32 v{vA1}, 2048, v{vA0}")
    a(f"v_and_b32 v11, 31, v0\nv_mul_u32_u24 v11, 80, v11\ns_mul_i32 s{T0}, s{sW}, 15360\nv_add_u32 v11, s{T0}, v11\nv_lshl_add_u32 v{vB}, v5, 4, v11\nv_lshl_add_u32 v{vE}, v5, 3, v11")
    a("s_waitcnt vmcnt(8)\nv_lshlrev_b32 v16, 16, v16\nv_lshlrev_b32 v17, 16, v17")
    expbf(a, 16, 11, sLH, sLL)
    a(f"v_readlane_b32 s{sD}, v17, 0\nv_readlane_b32 s{sD+1}, v17, 32\nv_add_f32 v17, v16, v16\nv_lshl_add_u32 v7, v0, 6, s68")
    for j in range(4):
        for i in range(4):
            a(f"v_lshlrev_b32 v{28+i}, 16, v{18+2*i+j//2}" if j % 2 == 0 else f"v_and_b32 v{28+i}, 0xffff0000, v{18+2*i+j//2}")
        expbf(a, 28, 11, sLH, sLL)
        a(f"v_mul_f32 v28, v28, v16\nv_mul_f32 v29, v29, v16\nv_mul_f32 v32, {F(-1.4426950408889634)}, v28\nv_mul_f32 v33, 0.15915494, v29\nv_mul_f32 v34, v30, v17\nv_mul_f32 v35, v31, v17")
        a(f"ds_write_b128 v7, v[32:35] offset:{16*j}")
    a(f"s_mov_b32 s{sCC}, 0")
    a.flush()
    a("S_CH:")
    KA = 48
    SET = (64, 80); PRM = (16, 20)
    a(f"s_waitcnt lgkmcnt(0)\nds_read_b128 {v(PRM[0],4)}, v{vPR}\ns_mov_b32 s{sCNT}, 16")
    for i in range(12): a(f"v_mov_b32 v{KA+i}, 0")
    for i in range(8): a(f"v_mov_b32 v{SET[1]+i}, 0")
    def kmf(st):
        return [f"v_mfma_f32_16x16x4_f32 {v(KA+4*t,4)}, v{st+4*x+t}, v{st+4*x+3}, {v(KA+4*t,4)}" for x in range(2) for t in range(3)]
    a.flush()
    a("S_KL:")
    for u in range(2):
        st, p = SET[u], PRM[u]; m, f = 24, 28
        a(f"s_waitcnt lgkmcnt(0)\nds_read_b128 {v(PRM[1-u],4)}, v{vPR} offset:{64*(u+1)}")
        mm = kmf(SET[1-u]); al = []
        for t in range(4): al += [f"v_mul_f32 v{f+t}, v{p+1}, v{POS+t}", f"v_mul_f32 v{m+t}, v{p}, v{POS+t}"]
        for t in range(4): al += [f"v_fract_f32 v{f+t}, v{f+t}"]
        for t in (3, 0, 1, 2): al += [f"v_exp_f32 v{m+t}, v{m+t}", f"v_cos_f32 v{st+8+t}, v{f+t}", f"v_sin_f32 v{f+t}, v{f+t}"]
        al += [f"v_mul_f32 v{st+11}, v{st+11}, v{m+3}", f"v_mul_f32 v{f+3}, v{f+3}, v{m+3}"]
        for t in range(3): al += [f"v_mul_f32 v{st+t}, v{st+8+t}, v{m+t}", f"v_mul_f32 v{st+4+t}, v{f+t}, v{m+t}"]
        al += [f"v_mul_f32 v{st+3}, v{st+11}, v{p+2}", f"v_mul_f32 v{st+7}, v{st+11}, v{p+3}", f"v_fma_f32 v{st+3}, -v{f+3}, v{p+3}, v{st+3}", f"v_fma_f32 v{st+7}, -v{f+3}, v{p+2}, -v{st+7}"]
        at = {2: 0, 10: 1, 14: 2, 17: 3, 20: 4, 23: 5}
        for n, x in enumerate(al):
            if n in at: a(mm[at[n]])
            a(x)
    a(f"v_add_u32 v{vPR}, 128, v{vPR}\ns_sub_u32 s{sCNT}, s{sCNT}, 1\ns_cmp_lg_u32 s{sCNT}, 0\ns_cbranch_scc1 S_KL")
    for x in kmf(SET[1]): a(x)
    a(f"s_cmp_lg_u32 s{sCC}, 0\ns_cbranch_scc1 S_NOU\ns_waitcnt vmcnt(0)")
    for ch in range(8):
        b = 96 + 4*(ch % 2)
        for t in range(4): a(f"v_perm_b32 v{b+t}, v{XR+8*t+4+ch//2}, v{XR+8*t+ch//2}, s{sLO_ + ch % 2}")
        a(f"ds_write_b128 v{vUT}, {v(b,4)} offset:{UL + 7680*ch + 2560}")
    a("s_waitcnt lgkmcnt(0)\ns_barrier")
    a("S_NOU:\ns_nop 15\ns_nop 3")
    for t in range(3): a(f"ds_write_b128 v{vTB}, {v(KA+4*t,4)} offset:{64*t}")
    a("s_waitcnt lgkmcnt(0)")
    G = 64
    for e in range(35): a(f"ds_read_b32 v{G+e}, v{GA+e}")
    a("s_waitcnt lgkmcnt(0)")
    for sg in range(4):
        for q in range(4):
            b = 104 + 4*((4*sg + q) % 4)
            for t in range(4): cvt(a, b+t, G+8*q+2*t+sg, G+8*q+2*t+sg+1)
            a(f"ds_write_b128 v{vR}, {v(b,4)} offset:{4160*sg + 16*q}")
    a("s_waitcnt lgkmcnt(0)")
    Y = (48, 64, 80); FR = lambda n: 96 + 16*(n % 3)
    def rdg(n):
        dl, kk = n//2, n % 2; o = (1984 - 64*dl + 32*kk)//8
        a(f"ds_read2_b64 {v(FR(n),4)}, v{vA0} offset0:{o} offset1:{o+1}\nds_read_b128 {v(FR(n)+4,4)}, v{vB} offset:{(64-dl)*80 + 32*kk}")
        a(f"ds_read_b128 {v(FR(n)+8,4)}, v{vB} offset:{(32-dl)*80 + 32*kk}\nds_read2_b64 {v(FR(n)+12,4)}, v{vA1} offset0:{o} offset1:{o+1}")
    def m32(d, A, B, first): a(f"v_mfma_f32_32x32x16_bf16 {v(d,16)}, {v(A,4)}, {v(B,4)}, {0 if first else v(d,16)}")
    rdg(0); rdg(1)
    for n in range(64):
        a(f"s_waitcnt lgkmcnt({4 if n < 63 else 0})")
        m32(Y[1], FR(n), FR(n)+4, n == 0)
        if n + 2 < 64: rdg(n+2)
        m32(Y[0], FR(n), FR(n)+8, n == 0); m32(Y[2], FR(n)+12, FR(n)+8, n == 0)
    for ct in range(2):
        for q in range(4): a(f"ds_read_b64 {v(16+8*ct+2*q,2)}, v{vE} offset:{(32+32*ct)*80 + 16*q}")
    for i in range(16): a(f"v_add_f32 v{Y[1]+i}, v{Y[1]+i}, v{Y[2]+i}")
    a("s_waitcnt lgkmcnt(0)")
    for ct in range(2):
        for q in range(4):
            u = 16+8*ct+2*q; y = Y[ct]+4*q
            a(f"v_lshlrev_b32 v96, 16, v{u}\nv_and_b32 v97, 0xffff0000, v{u}\nv_lshlrev_b32 v98, 16, v{u+1}\nv_and_b32 v99, 0xffff0000, v{u+1}")
            for i in range(4): a(f"v_fmac_f32 v{y+i}, s{sD}, v{96+i}")
            cvt(a, u, y, y+1); cvt(a, u+1, y+2, y+3)
            a(f"ds_write_b64 v{vE}, {v(u,2)} offset:{(32+32*ct)*80 + 16*q}")
    a(f"v_add_u32 v{vB}, 7680, v{vB}\nv_add_u32 v{vE}, 7680, v{vE}\ns_mov_b32 s{sD}, s{sD+1}\ns_add_u32 s{sCC}, s{sCC}, 1\ns_cmp_lt_u32 s{sCC}, 2")
    a.flush()
    a("s_cbranch_scc1 S_CH")
    a("s_waitcnt lgkmcnt(0)\ns_barrier")
    for ch in range(8): a(f"ds_read_b128 {v(64+4*ch,4)}, v{vUT} offset:{UL + 7680*ch + 2560}")
    a(f"v_mul_u32_u24 v11, 144, v0\nv_add_u32 v11, s66, v11\nv_lshrrev_b32 v12, 3, v0\nv_mul_u32_u24 v12, 144, v12\nv_and_b32 v13, 7, v0\nv_lshl_add_u32 v12, v13, 4, v12\nv_add_u32 v12, s66, v12")
    a(f"s_lshl_b32 s{T0}, s{sI}, 15\ns_lshl_b32 s{T1}, s{sW}, 13\ns_add_u32 s{T0}, s{T0}, s{T1}\ns_add_u32 s{T0}, s{T0}, {YT}\ns_add_u32 s{T1}, s{T0}, 4096\nv_lshlrev_b32 v13, 4, v0\ns_waitcnt lgkmcnt(0)")
    for j in range(8):
        b = 96 + 4*(j % 2)
        for m in range(4): a(f"v_perm_b32 v{b+m}, v{64+8*m+4+j//2}, v{64+8*m+j//2}, s{sLO_ + j % 2}")
        a(f"ds_write_b128 v11, {v(b,4)} offset:{16*j}")
    a("s_waitcnt lgkmcnt(0)")
    for i in range(8): a(f"ds_read_b128 {v(64+4*i,4)}, v12 offset:{1152*i}")
    for i in range(8): a(f"s_waitcnt lgkmcnt({7-i})\nbuffer_store_dwordx4 {v(64+4*i,4)}, v13, {s(WS,4)}, s{T0 if i < 4 else T1} offen offset:{1024*(i % 4)} sc1")
    arrive(a, D_S)
    a("s_branch O_ROLE")

def gate(a, cfg):
    a("G_ROLE:")
    srd(a, 16, 14, 1152)
    a(f"s_sub_u32 s{T0}, s{sI}, 72\ns_lshl_b32 s{T0}, s{T0}, 2\ns_add_u32 s{T0}, s{T0}, s{sW}\ns_lshl_b32 s{T2}, s{T0}, 7\ns_add_u32 s{T2}, s{T2}, {GT}\ns_mul_i32 s{T0}, s{T0}, 36864\ns_add_u32 s{T1}, s{T0}, 18432")
    a(f"v_and_b32 v1, 15, v0\nv_lshrrev_b32 v2, 4, v0\nv_lshlrev_b32 v2, 4, v2\nv_mul_u32_u24 v3, 1152, v1\nv_add_u32 v3, v3, v2\nv_lshlrev_b32 v1, 2, v1\ns_waitcnt lgkmcnt(0)")
    for n in range(18):
        a(f"buffer_load_dwordx4 {v(16+12*n,4)}, v2, s[16:19], 0 offen offset:{64*n}")
        for tt in range(2): a(f"buffer_load_dwordx4 {v(20+12*n+4*tt,4)}, v3, {s(SX,4)}, s{(T0, T1)[tt]} offen offset:{64*n}")
    for n in range(18):
        a(f"s_waitcnt vmcnt({51-3*n})")
        for tt in range(2): mf32(a, 8+4*tt, 16+12*n, 20+12*n+4*tt, 8+4*tt if n else None)
    a("s_mov_b64 exec, 0xffff")
    for tt in range(2):
        x = 8+4*tt
        a(f"v_mul_f32 v{x}, {F(-1.4426950408889634)}, v{x}\nv_exp_f32 v{x}, v{x}\nv_add_f32 v{x}, 1.0, v{x}\nv_rcp_f32 v{x}, v{x}\ns_nop 0")
        a(f"buffer_store_dword v{x}, v1, {s(WS,4)}, s{T2} offen offset:{64*tt} sc1")
    a("s_mov_b64 exec, -1")
    arrive(a, D_S)

def outp(a, cfg):
    a("OUTP:")
    a(f"s_sub_u32 s{sI}, s{sROLE}, 160\ns_cmp_lt_u32 s{sI}, 72\ns_cbranch_scc1 S_ROLE\ns_cmp_lt_u32 s{sI}, 88\ns_cbranch_scc1 G_ROLE")
    a(f"s_cmp_lg_u32 s{sI}, 88\ns_cbranch_scc1 O_ROLE")
    for i in range(4): a(f"v_mov_b32 v{4+i}, 0")
    a(f"v_lshlrev_b32 v3, 4, v0\ns_lshl_b32 s{T0}, s{sW}, 11")
    for i in range(2): a(f"buffer_store_dwordx4 v[4:7], v3, {s(WS,4)}, s{T0} offen offset:{1024*i} sc1")
    arrive(a, D_INIT)
    a("s_branch O_ROLE")
    ssm(a, cfg)
    gate(a, cfg)
    a.flush()
    a("O_ROLE:")
    rt(a, 2)
    if cfg.get("noO"): a("s_endpgm"); return
    SO = 16
    sSET, sCG, sLB, sOXO, sIT, sTK, sRED = 48, 49, 50, 51, 52, 53, 54
    srd(a, SO, 15, 2359296)
    a(f"s_mul_i32 s{sSET}, s{sI}, 43\ns_lshr_b32 s{sSET}, s{sSET}, 9\ns_mul_i32 s{T0}, s{sSET}, 12\ns_sub_u32 s{sCG}, s{sI}, s{T0}\ns_mul_i32 s{sLB}, s{sW}, 36864")
    a(f"s_mul_i32 s{T0}, s{sCG}, 96\ns_mul_i32 s{T1}, s{sW}, {32*36864}\ns_add_u32 s{T0}, s{T0}, s{T1}")
    for q in range(3):
        a(f"v_add_u32 v4, {64*q}, v0\nv_mul_u32_u24 v5, 171, v4\nv_lshrrev_b32 v5, 10, v5\nv_mul_u32_u24 v6, {1152-96}, v5\nv_lshl_add_u32 v6, v0, 4, v6\nv_add_u32 v{1+q}, s{T0}, v6")
    vTR = 7
    a(f"v_lshrrev_b32 v4, 2, v0\nv_mul_u32_u24 v4, 96, v4\nv_and_b32 v5, 3, v0\nv_lshl_add_u32 v4, v5, 3, v4\nv_add_u32 v{vTR}, s{sLB}, v4")
    W = lambda n, t: 128 + 12*n + 4*t
    def issue(n):
        a(f"s_add_u32 m0, s{sLB}, {(n % 12)*3072}\ns_mov_b32 s{T0}, {36864*n}")
        for q in range(3): a(f"buffer_load_dwordx4 v{1+q}, {s(SWO,4)}, s{T0} offen offset:{1024*q} lds")
    for n in range(12): issue(n)
    for n in range(32):
        a(f"s_waitcnt vmcnt({3*min(11, 31-n)})")
        for t in range(3):
            for hf in range(2): a(f"ds_read_b64_tr_b16 {r(W(n,t)+2*hf,2)}, v{vTR} offset:{(n % 12)*3072 + 1536*hf + 32*t}")
        if n + 12 < 32:
            a("s_waitcnt lgkmcnt(0)"); issue(n+12)
    vL, vF, vY, vG, vO, vRW, vRR = 1, 2, 3, 4, 5, 6, 7
    a("s_waitcnt lgkmcnt(0)")
    a(f"s_lshr_b32 s{T0}, s{sSET}, 1\ns_lshl_b32 s{T0}, s{T0}, 7\ns_lshl_b32 s{T1}, s{sW}, 5\ns_add_u32 s{T0}, s{T0}, s{T1}\ns_add_u32 s{T0}, s{T0}, {OF}")
    a(f"v_and_b32 v8, 7, v0\nv_lshl_add_u32 v{vF}, v8, 2, s{T0}\nv_lshlrev_b32 v{vL}, 4, v0")
    a(f"s_lshl_b32 s{sOXO}, s{sSET}, 17\ns_lshl_b32 s{T1}, s{sW}, 15\ns_add_u32 s{sOXO}, s{sOXO}, s{T1}\ns_add_u32 s{sOXO}, s{sOXO}, {OX}\ns_lshl_b32 s{sTK}, s{sSET}, 4\ns_mov_b32 s{sIT}, 0")
    a(f"v_and_b32 v8, 15, v0\nv_lshrrev_b32 v9, 4, v0\nv_lshlrev_b32 v{vG}, 2, v8\nv_add_u32 v{vG}, {GT}, v{vG}")
    a(f"s_min_u32 s{T2}, s{sW}, 2\ns_mul_i32 s{T0}, s{sCG}, 3\ns_add_u32 s{T0}, s{T0}, s{T2}\ns_lshl_b32 s{T1}, s{T0}, 16\ns_add_u32 s{T1}, s{T1}, {YT}\ns_lshl_b32 s{T0}, s{T0}, 5")
    a(f"v_lshrrev_b32 v10, 1, v9\nv_lshlrev_b32 v10, 15, v10\nv_lshl_add_u32 v10, v8, 4, v10\nv_and_b32 v11, 1, v9\nv_lshl_add_u32 v10, v11, 3, v10\nv_add_u32 v{vY}, s{T1}, v10")
    a(f"v_mul_u32_u24 v10, 1152, v8\nv_lshl_add_u32 v10, v9, 3, v10\nv_add_u32 v{vO}, s{T0}, v10")
    a(f"s_lshl_b32 s{T0}, s{sW}, 10\nv_add_u32 v{vRW}, s{T0}, v{vL}\ns_lshl_b32 s{T0}, s{T2}, 12\nv_add_u32 v{vRR}, s{T0}, v{vL}")
    rt(a, 3)
    wait_dbg(a, D_INIT, 1, 8)
    wait_dbg(a, D_S, 88, 8)
    rt(a, 4)
    a("s_barrier")
    a.flush()
    AC, FR = 16, lambda n: 32 + 4*(n % 24)
    a("O_LOOP:")
    a(f"s_lshl_b32 s{T0}, s{sTK}, 4\ns_lshl_b32 s{T1}, s{sTK}, 2")
    a(f"buffer_load_dwordx2 v[10:11], v{vY}, {s(WS,4)}, s{T0} offen sc1\nbuffer_load_dword v12, v{vG}, {s(WS,4)}, s{T1} offen sc1")
    a("O_W:")
    spin(a)
    a(f"buffer_load_dword v8, v{vF}, {s(WS,4)}, 0 offen sc1\ns_waitcnt vmcnt(0)\nv_cmp_ge_u32 vcc, s{sIT}, v8\ns_cbranch_vccnz O_W")
    rt(a, 5)
    def ld(n):
        if n % 4 == 0: a(f"s_add_u32 s{T0}, s{sOXO}, {1024*n}")
        a(f"buffer_load_dwordx4 {v(FR(n),4)}, v{vL}, {s(WS,4)}, s{T0} offen offset:{1024*(n % 4)} sc1")
    for n in range(24): ld(n)
    for n in range(32):
        a(f"s_waitcnt vmcnt({23 if n == 0 else min(22, 31-n)})")
        for t in range(3):
            mf32(a, AC+4*t, W(n,t), FR(n), AC+4*t if n else None)
            if t == 0 and 1 <= n <= 8: ld(n+23)
    a(f"s_add_u32 s{sOXO}, s{sOXO}, 0x100000\ns_mul_i32 s{T0}, s{sTK}, 1152\ns_add_u32 s{sTK}, s{sTK}, 128\ns_add_u32 s{sIT}, s{sIT}, 1")
    for t in range(3): a(f"ds_write_b128 v{vRW}, {v(AC+4*t,4)} offset:{4096*t}")
    a(f"v_xor_b32 v{vRW}, 0x4000, v{vRW}\ns_waitcnt lgkmcnt(0)\ns_barrier\ns_cmp_eq_u32 s{sW}, 3\ns_cbranch_scc1 O_NX")
    for x in range(4): a(f"ds_read_b128 {v(32+4*x,4)}, v{vRR} offset:{1024*x}")
    a(f"v_xor_b32 v{vRR}, 0x4000, v{vRR}\nv_sub_f32 v13, 1.0, v12\nv_lshlrev_b32 v16, 16, v10\nv_and_b32 v17, 0xffff0000, v10\nv_lshlrev_b32 v18, 16, v11\nv_and_b32 v19, 0xffff0000, v11")
    for i in range(4): a(f"v_mul_f32 v{16+i}, v13, v{16+i}")
    a("s_waitcnt lgkmcnt(0)")
    for i in range(4): a(f"v_add_f32 v{32+i}, v{32+i}, v{36+i}\nv_add_f32 v{40+i}, v{40+i}, v{44+i}\nv_add_f32 v{32+i}, v{32+i}, v{40+i}\nv_fmac_f32 v{16+i}, v12, v{32+i}")
    cvt(a, 14, 16, 17); cvt(a, 15, 18, 19)
    a(f"buffer_store_dwordx2 v[14:15], v{vO}, {s(SO,4)}, s{T0} offen")
    a("O_NX:")
    a(f"s_cmp_lt_u32 s{sIT}, 16")
    a.flush()
    a("s_cbranch_scc1 O_LOOP\ns_branch END")
```

```python
from common import *
from chain import mf32, mf16, cvt, selt_idx, DP
import struct
XB, PK, MA, KM, VM = 0, 73728, 122880, 132096, 136192
vL, vX1, vX2, vXB, vIDX, vA, vB, vC = 0, 1, 2, 3, 4, 5, 6, 7
SELT = 8; vM, vMW = 12, 13
sR, sN, sXO, sPAR, sKVO, sC, sMXO, sOXO, sWK = 47, 48, 49, 50, 51, 52, 53, 54, 55
sMASK = 60
def smf(a, d, A, B): a(f"v_smfmac_f32_16x16x64_bf16 {v(d,4)}, {v(A,4)}, {r(B,8)}, v{vIDX}")
def proj(a, cfg):
    a("PROJ:")
    a(f"s_sub_u32 s{T0}, s{sROLE}, 32\ns_lshr_b32 s{sH}, s{T0}, 5\ns_lshl_b32 s{sH}, s{sH}, 3\ns_and_b32 s{T1}, s{T0}, 7\ns_add_u32 s{sH}, s{sH}, s{T1}")
    a(f"s_bfe_u32 s56, s{T0}, 0x20003")
    load_weights(a, [], [((M, kb), wreg(M, kb, 0)) for M in (1, 2, 0) for kb in range(9)])
    rt(a, 2)
    a(f"s_mov_b32 s{sR}, s56")
    c_, g_ = 20, 21
    a(f"v_and_b32 v{c_}, 15, v0\nv_lshrrev_b32 v{g_}, 4, v0")
    a(f"s_and_b32 s{T0}, s{sW}, 1\ns_lshl_b32 s{T0}, s{T0}, 4\ns_lshr_b32 s{T1}, s{sW}, 1\ns_lshl_b32 s{T1}, s{T1}, 6")
    a(f"v_add_u32 v22, s{T0}, v{c_}\nv_mul_u32_u24 v23, 1152, v22\nv_add_u32 v23, s{T1}, v23")
    a(f"v_lshl_add_u32 v{vX2}, v{g_}, 4, v23\nv_lshrrev_b32 v24, 1, v{g_}\nv_lshlrev_b32 v24, 5, v24\nv_add3_u32 v{vX1}, v{vX2}, v24, s{T1}\nv_add_u32 v{vX2}, 1024, v{vX2}")
    a(f"s_mul_i32 s{sXO}, s{sR}, 36864\ns_lshl_b32 s{sWK}, s{sW}, 10\ns_mov_b32 s{sPAR}, 0")
    def xload():
        for kb in range(9):
            a(f"s_add_u32 m0, s{T2}, {kb*4096}")
            if kb < 8: a(f"s_add_u32 s{T0}, s{sXO}, {2*dcol(kb, 0)}\nbuffer_load_dwordx4 v{vX1}, {s(SX,4)}, s{T0} offen lds")
            else: a(f"buffer_load_dwordx4 v{vX2}, {s(SX,4)}, s{sXO} offen lds")
        a(f"s_add_u32 s{sXO}, s{sXO}, {4*36864}")
    a(f"s_mov_b32 s{T2}, s{sWK}")
    xload()
    a(f"v_lshlrev_b32 v24, 2, v{g_}\nv_sub_u32 v22, v22, v24")
    for i in range(8): a(f"v_cmp_le_i32 {s(sMASK+2*i,2)}, {16*(i//4) + i % 4}, v22")
    selt_idx(a, SELT, vIDX, c_, g_, 24)
    a(f"v_lshlrev_b32 v{vL}, 4, v0\nv_add_u32 v{vM}, {MA}, v{vL}\nv_add_u32 v{vMW}, s{sWK}, v{vM}")
    a(f"s_lshl_b32 s{T0}, s{sR}, 5\ns_add_u32 s{T0}, s{T0}, s{sH}\ns_lshl_b32 s{T0}, s{T0}, 14\ns_lshl_b32 s{T1}, s{sW}, 12\ns_add_u32 s{T0}, s{T0}, s{T1}\ns_add_u32 s{sKVO}, s{T0}, {KV}")
    a(f"s_lshl_b32 s{sMXO}, s{sR}, 14\ns_add_u32 s{sMXO}, s{sMXO}, {MEMX}")
    a(f"s_lshl_b32 s{T0}, s{sR}, 18\ns_and_b32 s{T1}, s{sW}, 1\ns_lshl_b32 s{T1}, s{T1}, 17\ns_add_u32 s{T0}, s{T0}, s{T1}\ns_lshl_b32 s{T1}, s{sH}, 12\ns_add_u32 s{T0}, s{T0}, s{T1}")
    a(f"s_lshr_b32 s{T1}, s{sW}, 1\ns_lshl_b32 s{T1}, s{T1}, 11\ns_add_u32 s{T0}, s{T0}, s{T1}\ns_add_u32 s{sOXO}, s{T0}, {OX}")
    a(f"s_mov_b32 s{sC}, {hex(struct.unpack('<I', struct.pack('<f', 128**-0.5 * 1.4426950408889634))[0])}\ns_mov_b32 s{sN}, 0")
    wait_dbg(a, D_INIT, 1, 24)
    a("s_barrier")
    rt(a, 3)
    a.flush()
    a("P_LOOP:")
    a(f"s_cmp_eq_u32 s{sN}, 16\ns_cbranch_scc1 P_ATT")
    a(f"s_mul_i32 s{T1}, s{sPAR}, 36864\nv_add_u32 v{vXB}, s{T1}, v{vL}")
    X = lambda n, tt: 64 + 8*(n % 2) + 4*tt
    def xr(n):
        for tt in range(2): a(f"ds_read_b128 {v(X(n,tt),4)}, v{vXB} offset:{n*2048 + tt*1024}")
    xr(0)
    a(f"s_cmp_eq_u32 s{sN}, 15\ns_cbranch_scc1 P_NOX\ns_sub_u32 s{T2}, 36864, s{T1}\ns_add_u32 s{T2}, s{T2}, s{sWK}")
    xload()
    a("P_NOX:")
    for n in range(18):
        kb, hf = n//2, n % 2
        a("s_waitcnt lgkmcnt(0)")
        first = True
        for M in (1, 2, 0):
            for tt in range(2):
                for j in range(2):
                    W = wreg(M, kb, j) + 4*hf
                    if M < 2: d = 16 + 16*M + 8*tt + 4*j; mf32(a, d, W, X(n,tt), d if n else None)
                    else: d = 48 + 8*j + 4*tt; mf32(a, d, X(n,tt), W, d if n else None)
                    if first and n < 17: xr(n+1)
                    first = False
    a(f"s_mul_i32 s{T1}, s{sPAR}, 24576\ns_add_u32 s{T1}, s{T1}, {PK}\ns_add_u32 s{T1}, s{T1}, s{sWK}\nv_add_u32 v{vA}, s{T1}, v{vL}")
    for f in (2, 3, 4, 5, 0, 1):
        b = 16 + 8*f
        for i in range(4): cvt(a, b+i, b+2*i, b+2*i+1)
        if f >= 2: a(f"buffer_store_dwordx4 {v(b,4)}, v{vL}, {s(WS,4)}, s{sKVO} offen offset:{1024*(f-2)} sc1")
        a(f"ds_write_b128 v{vA}, {v(b,4)} offset:{4096*f}")
    a(f"s_add_u32 s{sKVO}, s{sKVO}, 0x200000\ns_add_u32 s{T1}, s{sN}, 1\nv_mov_b32 v{vB}, s{T1}")
    a(f"s_lshl_b32 s{T0}, s{sH}, 5\ns_add_u32 s{T0}, s{T0}, s{sR}\ns_lshl_b32 s{T0}, s{T0}, 2")
    a(f"s_waitcnt vmcnt(0) lgkmcnt(0)\ns_barrier\ns_cmp_lg_u32 s{sW}, 0\ns_cbranch_scc1 P_NF1")
    a(f"s_mov_b64 exec, 1\nbuffer_store_dword v{vB}, off, {s(WS,4)}, s{T0} sc1\ns_mov_b64 exec, -1")
    a("P_NF1:")
    if CFG.get("rt"): a(f"s_cmp_eq_u32 s{sN}, 0\ns_cbranch_scc0 P_RT4"); rt(a, 4); a("P_RT4:")
    a(f"s_cmp_eq_u32 s{sN}, 0\ns_cbranch_scc1 P_NEXT")
    a("P_ATT:")
    a(f"s_lshl_b32 s{T1}, s{sN}, 2\ns_add_u32 s{T1}, s{T1}, s{sR}\ns_sub_u32 s{T1}, s{T1}, 4\ns_mov_b32 s{T0}, {MF}")
    for i in range(16, 32): a(f"v_mov_b32 v{i}, 0")
    a(f"s_xor_b32 s{T2}, s{sPAR}, 1\ns_mul_i32 s{T2}, s{T2}, 24576\ns_add_u32 s{T2}, s{T2}, {PK}\nv_add_u32 v{vA}, s{T2}, v{vL}")
    a(f"s_and_b32 s{T2}, s{sW}, 1\ns_lshl_b32 s{T2}, s{T2}, 12\nv_add_u32 v{vB}, s{T2}, v{vA}")
    a(f"s_lshr_b32 s{T2}, s{sW}, 1\ns_lshl_b32 s{T2}, s{T2}, 11\nv_add_u32 v{vC}, s{T2}, v{vA}\nv_add_u32 v14, s{T2}, v{vM}")
    a(f"v_lshrrev_b32 v33, 2, v{vL}\nv_min_u32 v33, 32, v33\nP_WM:")
    spin(a)
    a(f"buffer_load_dword v32, v33, {s(WS,4)}, s{T0} offen sc1\ns_waitcnt vmcnt(0)")
    a(f"v_cmp_ge_u32 vcc, s{T1}, v32\ns_cbranch_vccnz P_WM")
    rt(a, 5)
    a(f"s_add_u32 m0, s{sWK}, {MA}\ns_add_u32 s{T0}, s{sMXO}, s{sWK}\nbuffer_load_dwordx4 v{vL}, {s(WS,4)}, s{T0} offen sc1 lds")
    a(f"s_add_u32 m0, s{sWK}, {MA+4096}\ns_add_u32 s{T0}, s{T0}, 4096\nbuffer_load_dwordx4 v{vL}, {s(WS,4)}, s{T0} offen sc1 lds")
    a(f"s_add_u32 s{T0}, s{sMXO}, 8192\nbuffer_load_dwordx4 v[64:67], v{vL}, {s(WS,4)}, s{T0} offen sc1")
    a(f"s_add_u32 s{sMXO}, s{sMXO}, 65536\ns_waitcnt vmcnt(0)\ns_barrier")
    for kb in range(8): a(f"ds_read_b128 {v(32+4*kb,4)}, v{vM} offset:{1024*kb}")
    for M in (1, 2):
        for kb in (8, 0, 1, 2, 3, 4, 5, 6, 7):
            if M == 1 and kb < 8: a(f"s_waitcnt lgkmcnt({7-kb})")
            for j in range(2): smf(a, 16 + 8*(M-1) + 4*j, 32+4*kb, wreg(M, kb, j))
            if M == 2 and kb == 0:
                for i in range(4): cvt(a, 16+i, 16+2*i, 17+2*i)
            if M == 2 and kb == 1:
                mf16(a, 68, 16, SELT+2); mf16(a, 72, 18, SELT+2)
            if M == 2 and kb == 3:
                for i in range(4): cvt(a, 68+i, 68+2*i, 69+2*i)
                a(f"ds_write_b128 v{vMW}, v[68:71] offset:{KM-MA}")
    S0, S1, SM = 16, 20, 76
    for ec in range(4):
        a(f"ds_read_b128 {v(32+4*ec,4)}, v{vB} offset:{1024*ec}")
    for ec in range(3):
        for tt in range(2): a(f"ds_read_b128 {v(48+8*ec+4*tt,4)}, v{vA} offset:{4096*(2+tt) + 1024*ec}")
    for i in range(4): cvt(a, 24+i, 24+2*i, 25+2*i)
    a(f"ds_write_b128 v{vMW}, v[24:27] offset:{VM-MA}")
    a(f"ds_read_b128 v[72:75], v{vA} offset:{4096*2 + 3072}\nds_read_b128 v[28:31], v{vA} offset:{4096*3 + 3072}")
    a("s_waitcnt lgkmcnt(0)\ns_barrier")
    for ec in range(4):
        for tt in range(2):
            A = 48+8*ec+4*tt if (ec, tt) != (3, 1) else 28
            mf32(a, (S0, S1)[tt], A, 32+4*ec, (S0, S1)[tt] if ec else None)
        if ec == 1:
            for x in range(2): a(f"ds_read_b128 {v(48+4*x,4)}, v{vM} offset:{KM-MA + 1024*x}")
        if ec == 2:
            for x in range(2, 4): a(f"ds_read_b128 {v(48+4*x,4)}, v{vM} offset:{KM-MA + 1024*x}")
    for ec in range(4):
        a(f"s_waitcnt lgkmcnt({3-ec})")
        mf32(a, SM, 48+4*ec, 32+4*ec, SM if ec else None)
    for x in range(2):
        for j in range(2): a(f"ds_read_b128 {v(32+8*x+4*j,4)}, v{vC} offset:{4096*(4+j) + 1024*x}")
        a(f"ds_read_b128 {v(64+4*x,4)}, v14 offset:{VM-MA + 1024*x}")
    a("v_mov_b32 v26, 0xce6e6b28")
    for i in range(8): a(f"v_cndmask_b32 v{16+i}, v26, v{16+i}, {s(sMASK+2*i,2)}")
    a(f"v_mov_b32 v24, v{SM}\nv_mov_b32 v25, v{SM+1}")
    a("v_max3_f32 v26, v16, v17, v18\nv_max3_f32 v27, v19, v20, v21\nv_max3_f32 v26, v26, v22, v23\nv_max3_f32 v27, v27, v24, v25\nv_max_f32 v26, v26, v27\nv_mov_b32 v27, v26")
    a("v_permlane16_swap_b32 v26, v27\nv_max_f32 v26, v26, v27\nv_mov_b32 v27, v26")
    a(f"v_permlane32_swap_b32 v26, v27\nv_max_f32 v26, v26, v27\nv_mul_f32 v26, s{sC}, v26")
    for i in range(10): a(f"v_fma_f32 v{16+i}, v{16+i}, s{sC}, -v26")
    for i in range(10): a(f"v_exp_f32 v{16+i}, v{16+i}")
    for i in range(4): cvt(a, 28+i, 16+2*i, 17+2*i)
    cvt(a, 26, 24, 24); cvt(a, 27, 25, 25)
    a("s_waitcnt lgkmcnt(0)")
    for x in range(2):
        for j in range(2): mf32(a, 48+8*x+4*j, 32+8*x+4*j, 28)
    for x in range(2):
        for j in range(2): mf16(a, 48+8*x+4*j, 64+4*x+2*j, 26, 48+8*x+4*j)
    for i in range(5): a(f"v_add_f32 v{16+i}, v{16+i}, v{21+i}")
    a("v_add_f32 v16, v16, v17\nv_add_f32 v18, v18, v19\nv_add_f32 v16, v16, v20\nv_add_f32 v16, v16, v18\nv_mov_b32 v17, v16")
    a("v_permlane16_swap_b32 v16, v17\nv_add_f32 v16, v16, v17\nv_mov_b32 v17, v16")
    a("v_permlane32_swap_b32 v16, v17\nv_add_f32 v16, v16, v17\nv_rcp_f32 v16, v16")
    for x in range(2):
        b = 48 + 8*x
        for i in range(4): a(f"v_pk_mul_f32 {v(b+2*i,2)}, {v(b+2*i,2)}, v[16:17] op_sel_hi:[1,0]")
        for i in range(4): cvt(a, b+i, b+2*i, b+2*i+1)
        a(f"buffer_store_dwordx4 {v(b,4)}, v{vL}, {s(WS,4)}, s{sOXO} offen offset:{1024*x} sc1")
    a(f"s_add_u32 s{sOXO}, s{sOXO}, 0x100000\nv_mov_b32 v{vB}, s{sN}")
    a(f"s_lshl_b32 s{T0}, s{sR}, 5\ns_add_u32 s{T0}, s{T0}, s{sH}\ns_lshl_b32 s{T0}, s{T0}, 2\ns_add_u32 s{T0}, s{T0}, {OF}")
    a(f"s_waitcnt vmcnt(0)\ns_barrier\ns_cmp_lg_u32 s{sW}, 0\ns_cbranch_scc1 P_NEXT")
    a(f"s_mov_b64 exec, 1\nbuffer_store_dword v{vB}, off, {s(WS,4)}, s{T0} sc1\ns_mov_b64 exec, -1")
    a("P_NEXT:")
    a(f"s_xor_b32 s{sPAR}, s{sPAR}, 1\ns_add_u32 s{sN}, s{sN}, 1\ns_cmp_le_u32 s{sN}, 16")
    a.flush()
    a("s_cbranch_scc1 P_LOOP\ns_branch END")
```
